```python
import torch

def _softmax(x, axis=-1):
    return torch.softmax(x, dim=axis)

def _gelu(x):
    return torch.nn.functional.gelu(x, approximate='tanh')

def _silu(x):
    return torch.nn.functional.silu(x)

def _sigmoid(x):
    return torch.sigmoid(x)

def _layernorm(x, axis=-1, eps=1e-05):
    m = x.mean(dim=axis, keepdim=True)
    v = x.var(dim=axis, keepdim=True, unbiased=False)
    return (x - m) / torch.sqrt(v + eps)

def _scatter_add(tgt, idx, src, axis=0):
    return tgt.clone().index_add_(axis, idx, src)

def _segment_sum(src, seg, n):
    out = torch.zeros((n,) + src.shape[1:], dtype=src.dtype)
    return out.index_add_(0, seg, src)

def _pad(x, pw):
    flat = tuple((v for pair in reversed(pw) for v in pair))
    return torch.nn.functional.pad(x, flat)
kernel_name = 'concat_heads__mha_block__memory_aug_recurrent_mem_tr__prompt'

def setup_inputs():

    _w = lambda a: (lambda t: t.to(torch.bfloat16) if t.is_floating_point() else t)(torch.as_tensor(a))

    def _A_setup():
        B, S, D, H = (1, 2048, 512, 32)
        return {'x': _w((lambda *s: torch.randn(*s, dtype=torch.bfloat16) * 0.2)(B, S, D)), 'wqkv': _w((lambda *s: torch.randn(*s, dtype=torch.bfloat16) * 0.2)(D, 3 * D)), 'wo': _w((lambda *s: torch.randn(*s, dtype=torch.bfloat16) * 0.05)(D, D))}
    _A_in = _A_setup()

    def _B_setup():
        B, S, Dm = (1, 2048, 512)
        H, Dh = (32, 128)
        M, seg = (8, 32)
        seg = min(seg, S)
        S = S // seg * seg
        return {'x': _w((lambda *s: torch.randn(*s, dtype=torch.bfloat16) * 0.05)(B, S, Dm)), 'mem0': _w((lambda *s: torch.randn(*s, dtype=torch.bfloat16) * 0.8)(B, M, Dm)), 'Wq': _w((lambda *s: torch.randn(*s, dtype=torch.bfloat16) * 1.6)(Dm, H, Dh) * Dm ** (-0.5)), 'Wk': _w((lambda *s: torch.randn(*s, dtype=torch.bfloat16) * 1.6)(Dm, H, Dh) * Dm ** (-0.5)), 'Wv': _w((lambda *s: torch.randn(*s, dtype=torch.bfloat16) * 0.8)(Dm, H, Dh) * Dm ** (-0.5)), 'Wo': _w((lambda *s: torch.randn(*s, dtype=torch.bfloat16) * 0.8)(H, Dh, Dm) * (H * Dh) ** (-0.5)), 'seg_len': seg}
    _B_in = _B_setup()
    return {'A_x': _A_in['x'], 'A_wqkv': _A_in['wqkv'], 'A_wo': _A_in['wo'], 'B_x': _B_in['x'], 'B_mem0': _B_in['mem0'], 'B_Wq': _B_in['Wq'], 'B_Wk': _B_in['Wk'], 'B_Wv': _B_in['Wv'], 'B_Wo': _B_in['Wo'], 'B_seg_len': _B_in['seg_len']}

def reference(A_x, A_wqkv, A_wo, B_x, B_mem0, B_Wq, B_Wk, B_Wv, B_Wo, B_seg_len):

    def _A_ref(x, wqkv, wo):
        B, S, D = x.shape
        H = 32
        Dh = D // H
        qkv = (lambda x, *d: x.permute(*d))((x @ wqkv).reshape(B, S, 3, H, Dh), 2, 0, 3, 1, 4)
        q, k, v = (qkv[0], qkv[1], qkv[2])
        scores = torch.einsum('bhqd,bhkd->bhqk', q, k) * Dh ** (-0.5)
        p = _softmax(scores, axis=-1)
        o = torch.einsum('bhqk,bhkd->bhqd', p, v)
        return (lambda x, *d: x.permute(*d))(o, 0, 2, 1, 3).reshape(B, S, D) @ wo

    def _B_ref(x, mem0, Wq, Wk, Wv, Wo, seg_len):
        B, S, Dm = x.shape
        H, Dh = (Wq.shape[1], Wq.shape[2])
        M = mem0.shape[1]
        scale = Dh ** (-0.5)
        n_seg = S // seg_len
        L = M + seg_len
        idx = torch.arange(L)
        mask = (idx[:, None] < M) | (idx[:, None] >= idx[None, :])
        mem = mem0
        outs = []
        for s in range(n_seg):
            xs = x[:, s * seg_len:(s + 1) * seg_len, :].clone()
            h = torch.concatenate([mem, xs], axis=1)
            q = torch.einsum('btd,dhe->bhte', h, Wq)
            k = torch.einsum('btd,dhe->bhte', h, Wk)
            v = torch.einsum('btd,dhe->bhte', h, Wv)
            scores = torch.einsum('bhqe,bhke->bhqk', q, k) * scale
            scores = torch.where(mask[None, None], scores, -1000000000.0)
            p = _softmax(scores, axis=-1)
            o = torch.einsum('bhqk,bhke->bhqe', p, v)
            o = torch.einsum('bhte,hed->btd', o, Wo)
            mem = o[:, :M, :].clone()
            outs.append(o[:, M:, :])
        return torch.concatenate(outs, axis=1)
    a = _A_ref(A_x, A_wqkv, A_wo)
    b = _B_ref(B_x, B_mem0, B_Wq, B_Wk, B_Wv, B_Wo, B_seg_len)
    return torch.concatenate([a, b], axis=-1)
```

```python
import re

def _regs(tok):
    tok = tok.strip()
    tok = tok.replace("abs(", "").replace(")", "").replace("|", "")
    if tok.startswith("-"): tok = tok[1:]
    m = re.fullmatch(r"([vas])(\d+)", tok)
    if m: return {(m.group(1), int(m.group(2)))}
    m = re.fullmatch(r"([vas])\[(\d+):(\d+)\]", tok)
    if m: return {(m.group(1), n) for n in range(int(m.group(2)), int(m.group(3)) + 1)}
    if tok in ("vcc", "exec", "m0", "scc"): return {("x", tok)}
    if tok in ("vcc_lo", "vcc_hi"): return {("x", "vcc")}
    if tok in ("exec_lo", "exec_hi"): return {("x", "exec")}
    return set()

TRANS = ("v_exp_f32", "v_log_f32", "v_rcp_f32", "v_rsq_f32", "v_sqrt_f32", "v_sin_f32", "v_cos_f32")

class Ins:
    def __init__(self, text):
        self.text = text
        t = text.split(";")[0].strip()
        self.label = None; self.op = None
        self.w = set(); self.r = set(); self.kind = "other"
        self.srcc = set(); self.ab = set(); self.passes = 0; self.stdata = set(); self.target = None
        self.dpp = False; self.nop = 1
        if not t or t.startswith("."):
            self.kind = "none"; return
        if t.endswith(":"):
            self.label = t[:-1]; self.kind = "none"; return
        parts = t.split(None, 1)
        op = parts[0]; self.op = op
        rest = parts[1] if len(parts) > 1 else ""
        ops = [o.strip() for o in re.split(r",", rest)] if rest else []
        mods = ""
        if ops:
            sp = ops[-1].split(None, 1)
            ops[-1] = sp[0]; mods = sp[1] if len(sp) > 1 else ""
        R = [_regs(o) for o in ops]
        if op.startswith("v_mfma") or op.startswith("v_smfmac"):
            self.kind = "mfma"
            self.passes = 8 if "32x32" in op else 4
            self.w = R[0]; self.ab = R[1] | R[2]
            if op.startswith("v_smfmac"):
                self.srcc = R[0]; self.ab |= R[3]
            else:
                self.srcc = R[3]
            self.r = self.ab | self.srcc
        elif op.startswith("v_"):
            self.kind = "valu"
            base = op.replace("_e32", "").replace("_e64", "").replace("_dpp", "")
            self.trans = base in TRANS
            self.dpp = "_dpp" in op or "row_" in mods or "quad_perm" in mods
            if base.startswith("v_permlane") or base == "v_swap_b32":
                self.w = R[0] | R[1]; self.r = R[0] | R[1]
            elif base in ("v_add_co_u32", "v_sub_co_u32", "v_addc_co_u32", "v_subb_co_u32"):
                self.w = R[0] | R[1]; self.r = set().union(*R[2:])
            elif base == "v_nop":
                pass
            else:
                self.w = R[0]; self.r = set().union(*R[1:]) if len(R) > 1 else set()
                if base.startswith("v_fmac") or self.dpp or base.startswith("v_writelane"): self.r |= R[0]
                if base.startswith("v_cmpx"): self.w |= {("x", "exec")}
        elif op.startswith("ds_"):
            self.kind = "ds"
            if op.startswith("ds_read") or op.startswith("ds_bpermute") or op.startswith("ds_swizzle"):
                self.w = R[0]; self.r = set().union(*R[1:])
            else:
                self.r = set().union(*R)
        elif op.startswith("buffer_") or op.startswith("global_"):
            self.kind = "vmem"
            self.lds = bool(re.search(r"\blds\b", mods)) or "load_lds" in op
            if op in ("buffer_inv", "buffer_wbl2"):
                pass
            elif "load" in op and not self.lds:
                self.w = R[0]; self.r = set().union(*R[1:])
            elif "atomic" in op:
                self.r = set().union(*R)
                if "sc0" in mods: self.w = R[0]
            else:
                self.r = set().union(*R)
                if "store" in op and ("x4" in op or "x3" in op):
                    self.stdata = R[0] if op.startswith("buffer_") else R[1]
            if self.lds: self.r |= {("x", "m0")}
        elif op.startswith("s_"):
            self.kind = "salu"
            if op == "s_nop": self.nop = int(ops[0], 0) + 1
            elif op.startswith("s_cbranch") or op == "s_branch":
                self.target = ops[0]
            elif op in ("s_waitcnt", "s_barrier", "s_endpgm", "s_sleep", "s_setprio"):
                pass
            elif op.startswith("s_cmp"):
                self.r = set().union(*R)
            else:
                self.w = R[0] if R else set(); self.r = set().union(*R[1:]) if len(R) > 1 else set()
                if "saveexec" in op: self.w |= {("x", "exec")}

def isv(rs): return {r for r in rs if r[0] in "va"}
def iss(rs): return {r for r in rs if r[0] == "s" or r == ("x", "vcc")}

def need(p, c):
    n = 0
    if p.kind == "mfma":
        P = p.passes
        big = {4: 8, 8: 12}[P]; ov = {4: 6, 8: 10}[P]; war = {4: 3, 8: 7}[P]
        if c.kind == "mfma":
            if p.w & c.ab: n = max(n, big)
            if p.w & c.srcc and not (p.w == c.srcc and p.op == c.op): n = max(n, ov)
            elif p.w & c.w and not (p.w == c.w and p.op == c.op): n = max(n, ov)
        elif c.kind in ("valu", "ds", "vmem"):
            if p.w & (c.r | c.w): n = max(n, big)
            if c.kind == "valu" and p.srcc & c.w: n = max(n, war)
    elif p.kind == "valu":
        pv = isv(p.w); ps = iss(p.w)
        if c.kind == "mfma":
            if pv & c.r: n = max(n, 2)
            if ("x", "exec") in p.w: n = max(n, 4)
        elif c.kind == "valu":
            cb = c.op
            if pv & c.r:
                if c.dpp or cb.startswith("v_permlane"): n = max(n, 2)
                if cb.startswith("v_readlane") or cb.startswith("v_readfirstlane"): n = max(n, 1)
                if p.trans and not c.trans: n = max(n, 1)
            if ps & c.r:
                n = max(n, 4 if (cb.startswith("v_readlane") or cb.startswith("v_writelane")) else 2)
            if ("x", "exec") in p.w: n = max(n, 5)
        elif c.kind == "vmem":
            if ps & c.r: n = max(n, 5)
            if p.trans and pv & c.r: n = max(n, 1)
        elif c.kind == "ds":
            if p.trans and pv & c.r: n = max(n, 1)
    elif p.kind == "vmem":
        if p.stdata & c.w: n = max(n, 2 if c.kind == "valu" else 1)
    elif p.kind == "salu":
        if ("x", "m0") in p.w and c.kind == "vmem" and getattr(c, "lds", False): n = max(n, 1)
    return n

def fix_hazards(lines, verbose=True):
    inserted = []
    while True:
        ins = [Ins(l) for l in lines]
        lab = {i.label: k for k, i in enumerate(ins) if i.label}
        fix = {}
        for k, p in enumerate(ins):
            if p.kind not in ("mfma", "valu", "vmem", "salu"): continue
            if p.kind == "vmem" and not p.stdata: continue
            if p.kind == "salu" and ("x", "m0") not in p.w: continue
            horizon = 4 * ((13 if p.passes == 8 else 9) if p.kind == "mfma" else 6)
            def dur(x):
                if x.kind == "valu" and (x.trans or x.op.startswith("v_permlane")): return 8
                return 4 * x.nop
            def blocks(x, t0):
                if x.kind == "mfma": return (t0 + (12 if x.op.startswith("v_smfmac") else 8), t0 + 8)
                if x.kind == "valu": return (0, t0 + 12)
                return (0, 0)
            stack = [(k + 1, 4, (4 * p.passes) if p.kind == "mfma" else 0) + (blocks(p, 0) if p.kind == "mfma" else (0, 0))]
            seen = {}
            while stack:
                j, t, mf, bv, bm = stack.pop()
                while j < len(ins) and t < horizon:
                    c = ins[j]
                    if c.kind == "none":
                        j += 1; continue
                    key = (j,)
                    if key in seen and seen[key][0] <= t and seen[key][1] <= mf: break
                    seen[key] = (t, mf)
                    tt = max(t, mf) if c.kind == "mfma" else t
                    if p.kind == "mfma":
                        if c.kind == "valu": tt = max(tt, bv)
                        if c.kind in ("ds", "vmem"): tt = max(tt, bm)
                    n = need(p, c)
                    if n and tt < 4 * (n + 1):
                        fix[j] = max(fix.get(j, 0), (4 * (n + 1) - t + 3) // 4)
                    if c.kind == "mfma": mf = tt + 4 * c.passes
                    b2 = blocks(c, tt); bv = max(bv, b2[0]); bm = max(bm, b2[1])
                    t = tt + (dur(c) if p.kind == "mfma" else 4 * c.nop)
                    if p.kind == "mfma" and c.op in ("s_cbranch_vccz", "s_cbranch_vccnz") and ins[j-1].kind == "valu" and ("x", "vcc") in ins[j-1].w:
                        t = tt + 20
                    if c.op == "s_endpgm": break
                    if c.target is not None:
                        if c.target not in lab: raise Exception("unknown label " + c.target)
                        stack.append((lab[c.target], t, mf, bv, bm))
                        if c.op == "s_branch": break
                    j += 1
        if not fix: break
        j = min(fix)
        js = []
        last = -100
        for j in sorted(fix):
            if j - last > 16: js.append(j)
            last = j
        for j in reversed(js):
            n = fix[j]
            inserted.append((lines[j].strip(), n))
            add = []
            while n > 0:
                m = min(n, 16); add.append(f"  s_nop {m-1}   ; hz"); n -= m
            lines = lines[:j] + add + lines[j:]
    if verbose:
        for t, n in inserted: print("  [hz] +%d before: %s" % (n, t))
    return lines

class G:
    def __init__(self): self.lines = []
    def __call__(self, text):
        for l in text.split("\n"):
            if l.strip(): self.lines.append(l if l.strip().endswith(":") else "  " + l.strip())
    def text(self, verbose=True):
        return "\n".join(fix_hazards(self.lines, verbose)) + "\n"

def vr(b, n=1, k="v"):
    return f"{k}{b}" if n == 1 else f"{k}[{b}:{b+n-1}]"
```

```python
import math, struct
NAME = "concat_heads__mha_block__memory_aug_recurrent_mem_tr__prompt"
MB_ = 1 << 20
WS_QX, WS_KX, WS_VX, WS_OX = 0, 16*MB_, 32*MB_, 48*MB_
WS_EX = 64*MB_
WS_FL = 80*MB_
WS_M = 81*MB_
WS_HINT = 82*MB_
WS_DBG = 83*MB_
WS_PART = 86*MB_
WS_AQ, WS_AK, WS_AV, WS_AO = 88*MB_, 90*MB_, 92*MB_, 94*MB_
WS_SIZE = 256*MB_
FL_B, FL_FA, FL_A1, FL_A2, FL_JUNK = WS_FL, WS_FL + 4096, WS_FL + 4608, WS_FL + 4736, WS_FL + 6144
L_KB, L_MB, L_XB, L_OB, L_W = 0, 16384, 24576, 24576+4352, 32768
XPL = 1088
LDS_BYTES = 163840
CSCALE = math.log2(math.e) / math.sqrt(128.0)
ASCALE = math.log2(math.e) / 4.0
NEGBIG = "0xf149f2ca"
def f32(x): return "0x%08x" % struct.unpack("<I", struct.pack("<f", x))[0]
S_WS = 4
S_A = 8
S_DBG = 12
sW, sH, sBudget, sStep = 16, 17, 18, 19
W = f"s[{S_WS}:{S_WS+3}]"
def srd(g, base, karg_off, nbytes):
    g(f"s_load_dwordx2 s[{base}:{base+1}], s[0:1], {karg_off}")
    g(f"s_mov_b32 s{base+2}, {nbytes}")
    g(f"s_mov_b32 s{base+3}, 0x20000")
```

```python
from asmgen import *
from cfg import *
sK = 3
sT0, sT1, sT2, sT3 = 20, 21, 22, 23
vL = 255
MF16 = "v_mfma_f32_16x16x32_bf16"
MF32 = "v_mfma_f32_32x32x16_bf16"
def cvt(d, a, b): return f"v_cvt_pk_bf16_f32 v{d}, v{a}, v{b}"

def tstamp(g, o, n, vt=254):
    if not o.prof: return
    g(f"""s_memrealtime s[98:99]
    s_waitcnt lgkmcnt(0)
    v_mov_b32 v{vt}, s98
    s_mov_b64 exec, 1
    buffer_store_dword v{vt}, off, {W}, s97 offset:{4*n}
    s_mov_b64 exec, -1""")

def spin(g, name, vaddr, soff, vreq, vtmp, srd_=W, one=False, sleep=2):
    if one: g(f"s_cmp_eq_u32 s{sW}, 0\ns_cbranch_scc0 {name}_ok")
    g(f"""{name}:
    buffer_load_dword v{vtmp}, v{vaddr}, {srd_}, {soff} offen sc1
    s_waitcnt vmcnt(0)
    v_cmp_gt_u32 vcc, v{vreq}, v{vtmp}
    s_cbranch_vccz {name}_ok
    s_sleep {sleep}
    s_sub_u32 s{sBudget}, s{sBudget}, 1
    s_cbranch_scc0 {name}
    s_endpgm
    {name}_ok:""")

def wait_init(g, name, t0, one=False):
    g(f"v_mov_b32 v{t0}, 4\nv_mov_b32 v{t0+1}, 32")
    spin(g, name, t0, 0, t0+1, t0+2, f"s[{S_DBG}:{S_DBG+3}]", one=one, sleep=8)

def set_flag(g, sflag, val, vt, one=False):
    if one: g(f"s_cmp_eq_u32 s{sW}, 0")
    g(f"""v_mov_b32 v{vt}, {val}
    {"s_cselect_b64 exec, 1, 0" if one else "s_mov_b64 exec, 1"}
    buffer_store_dword v{vt}, off, {W}, s{sflag} sc1
    s_mov_b64 exec, -1""")

S_WT, S_X, S_D = 24, 28, 32
sWoff, sWstr, sXoff, sXstep, sD0, sDdel, sDstep, sScale, sNseg, sFlag, sForm, sPerm, sPhase, sN, sBuf, sD1 = range(36, 52)
sExE = 52
sExF = 54
def gen_gemm(g, o):
    ACC = [0, 16]; XF = 32; NXF = 8; vXs = 64; vXr0 = 72; vXr = 76; vSt = 80; t0, t1, t2 = 81, 82, 83
    i, gg, a, c = 84, 85, 86, 87; vF = 88
    X, WT, D = [f"s[{b}:{b+3}]" for b in (S_X, S_WT, S_D)]
    g("G_entry:")
    g(f"""v_and_b32 v{i}, 15, v{vL}
    v_lshrrev_b32 v{gg}, 4, v{vL}
    v_lshrrev_b32 v{a}, 2, v{i}
    v_and_b32 v{c}, 3, v{vL}""")
    g(f"""s_lshr_b32 s{sT0}, s{sW}, 1
    s_lshl_b32 s{sT0}, s{sT0}, 3
    v_lshlrev_b32 v{t0}, 1, v{gg}
    v_or_b32 v{t0}, s{sT0}, v{t0}
    v_xor_b32 v{t0}, v{t0}, v{i}
    s_lshl_b32 s{sT0}, s{sW}, 2
    v_add_u32 v{t1}, s{sT0}, v{gg}
    v_mul_lo_u32 v{t1}, v{t1}, s{sWstr}
    v_lshl_add_u32 v{t0}, v{t0}, 4, v{t1}
    s_lshl_b32 s{sT1}, s{sW}, 10
    s_add_u32 s{sT1}, s{sT1}, 32768
    s_lshl_b32 s{sT2}, s{sWstr}, 4
    s_mov_b32 s{sT0}, s{sWoff}
    s_waitcnt lgkmcnt(0)
    s_barrier""")
    for m in range(32):
        g(f"""s_mov_b32 m0, s{sT1}
        s_add_u32 s{sT1}, s{sT1}, 4096
        buffer_load_dwordx4 v{t0}, {WT}, s{sT0} offen lds
        s_add_u32 s{sT0}, s{sT0}, s{sT2}""")
    g(f"s_lshl_b32 s{sT0}, s{sW}, 3")
    for m in range(8):
        g(f"""s_add_u32 s{sT1}, s{sT0}, {m}
        s_and_b32 s{sT2}, s{sT1}, 15
        s_lshl_b32 s{sT1}, s{sT1}, 10
        v_xor_b32 v{vXs+m}, s{sT2}, v{vL}
        v_lshlrev_b32 v{vXs+m}, 4, v{vXs+m}
        v_add_u32 v{vXs+m}, s{sT1}, v{vXs+m}""")
    for tl in range(4):
        g(f"""v_add_u32 v{t1}, {4*tl}, v{gg}
        v_xor_b32 v{t1}, v{t1}, v{i}
        v_lshlrev_b32 v{t1}, 4, v{t1}
        v_lshl_add_u32 v{vXr0+tl}, v{i}, 10, v{t1}
        v_mov_b32 v{vXr+tl}, v{vXr0+tl}""")
    g(f"s_cmp_eq_u32 s{sPhase}, 3\ns_cbranch_scc0 G_nowait")
    g(f"v_lshlrev_b32 v{t0}, 2, v{vL}\nv_mov_b32 v{t1}, 1")
    for k in range(3):
        g(f"s_mov_b32 s{sT0}, {FL_A2 + 256*k}")
        spin(g, f"G_wa{k}", t0, f"s{sT0}", t1, t2, one=True, sleep=16)
    g("s_barrier")
    g("G_nowait:")
    def xdma(m0base):
        L = []
        for m in range(8):
            L.append([f"s_add_u32 m0, s{m0base}, {1024*m}", f"buffer_load_dwordx4 v{vXs+m}, {X}, s{sXoff} offen sc1 lds"])
        return L
    g(f"s_lshl_b32 s{sBuf}, s{sW}, 13")
    for p in xdma(sBuf): g(p[0]); g("s_nop 0"); g(p[1])
    g(f"s_add_u32 s{sXoff}, s{sXoff}, s{sXstep}")
    g(f"""s_cmp_eq_u32 s{sPerm}, 0
    s_cselect_b32 s{sT0}, 3, 4
    s_cselect_b32 s{sT1}, 32, 8
    v_lshlrev_b32 v{t0}, s{sT0}, v{c}
    s_lshl_b32 s{sT2}, s{sW}, 6
    v_add_u32 v{t0}, s{sT2}, v{t0}
    v_add_u32 v{t1}, s{sT1}, v{t0}
    v_and_b32 v{t2}, 1, v{gg}
    v_lshl_add_u32 v{t2}, v{t2}, 2, v{a}
    v_lshlrev_b32 v{t2}, 5, v{t2}
    v_xor_b32 v{t0}, v{t0}, v{t2}
    v_xor_b32 v{t1}, v{t1}, v{t2}
    v_lshl_add_u32 v{t2}, v{gg}, 3, v{a}
    v_lshlrev_b32 v{t2}, 8, v{t2}
    v_add_u32 v{t2}, 32768, v{t2}
    v_add_u32 v{t0}, v{t0}, v{t2}
    v_add_u32 v{t1}, v{t1}, v{t2}
    s_waitcnt vmcnt(8)
    s_barrier""")
    for t in range(16):
        if t == 8: g(f"v_add_u32 v{t0}, 0x10000, v{t0}\nv_add_u32 v{t1}, 0x10000, v{t1}")
        for T in range(2):
            for hh in range(2):
                g(f"ds_read_b64_tr_b16 {vr((T*16+t)*4+2*hh, 2, 'a')}, v{(t0,t1)[T]} offset:{((t&7)*32+4*hh)*256}")
        if t % 2 == 1: g("s_waitcnt lgkmcnt(0)")
    g("s_barrier")
    g(f"s_add_u32 s{sBuf}, s{sBuf}, 32768")
    for p in xdma(sBuf): g(p[0]); g("s_nop 0"); g(p[1])
    wait_init(g, "G_init", t0, one=True)
    g("s_waitcnt vmcnt(0)")
    tstamp(g, o, 1)
    g(f"""s_mov_b32 s{sN}, 0
    s_mov_b64 s[{sExE}:{sExE+1}], 0
    s_cmp_eq_u32 s{sWstr}, 8192
    s_cselect_b64 s[{sExF}:{sExF+1}], 1, 0
    s_cmp_eq_u32 s{sW}, 0
    s_cselect_b64 s[{sExF}:{sExF+1}], s[{sExF}:{sExF+1}], 0
    s_cmp_eq_u32 s{sForm}, 0
    s_cbranch_scc0 G_loopV""")
    def epilogue(form, A):
        L = []
        if form == "T":
            for k in range(16): L.append(f"v_mul_f32 v{A+k}, s{sScale}, v{A+k}")
        for x in range(2):
            for k in range(4): L.append(cvt(A+8*x+k, A+8*x+2*k, A+8*x+2*k+1))
        return L
    def stores(A):
        return [f"buffer_store_dwordx4 {vr(A,4)}, v{vSt}, {D}, s{sD0} offen sc1", f"buffer_store_dwordx4 {vr(A+8,4)}, v{vSt}, {D}, s{sD1} offen sc1"]
    def xrd(f):
        t, aa = f >> 1, f & 1
        return f"ds_read_b128 {vr(XF+4*(f % NXF),4)}, v{vXr+(t&3)} offset:{aa*16384 + (t>>2)*256}"
    for form in ("T", "V"):
        g(f"G_loop{form}:")
        for p in range(2):
            A, B = ACC[p], ACC[1-p]
            g("s_waitcnt vmcnt(10)")
            g("s_barrier")
            LA = 6
            for f in range(LA): g(xrd(f))
            g(f"""s_add_u32 s{sT0}, s{sN}, 2
            s_cmp_lt_u32 s{sT0}, s{sNseg}
            s_cselect_b32 s{sT1}, s{sXstep}, 0
            s_add_u32 s{sXoff}, s{sXoff}, s{sT1}
            s_add_u32 s{sBuf}, s{sBuf}, 32768
            s_and_b32 s{sBuf}, s{sBuf}, 0x1ffff
            s_add_u32 s{sD1}, s{sD0}, s{sDdel}
            s_sub_i32 s{sT2}, s{sN}, 2
            s_max_i32 s{sT2}, s{sT2}, 0
            s_add_u32 s{sN}, s{sN}, 1
            s_and_b32 s{sT3}, s{sN}, 3
            s_lshl_b32 s{sT3}, s{sT3}, 15""")
            val = epilogue(form, B) + [f"v_mov_b32 v{vF}, s{sT2}"]
            nv = len(val)
            st = stores(B); dm = xdma(sBuf)
            second = {}
            f0 = (nv + 1) // 2 + 1
            second[f0] = [f"s_mov_b64 exec, s[{sExE}:{sExE+1}]", st[0], "s_mov_b64 exec, -1"]
            second[f0+2] = [f"s_mov_b64 exec, s[{sExE}:{sExE+1}]", st[1], "s_mov_b64 exec, -1"]
            second[f0+4] = [f"s_mov_b64 exec, s[{sExF}:{sExF+1}]", f"buffer_store_dword v{vF}, off, {W}, s{sFlag} sc1", "s_mov_b64 exec, -1"]
            for m in range(8): second[f0+5+m] = [dm[m][0], "s_nop 0", dm[m][1]]
            assert f0 + 13 <= 31
            for f in range(32):
                t, aa = f >> 1, f & 1
                xf = vr(XF+4*(f % NXF), 4)
                g(f"s_waitcnt lgkmcnt({min(LA-1, 31-f)})")
                for T in range(2):
                    wf = vr((T*16+t)*4, 4, "a")
                    acc = A + (8*aa + 4*T if form == "T" else 8*T + 4*aa)
                    C = vr(acc, 4) if t else "0"
                    g(f"{MF16} {vr(acc,4)}, {wf}, {xf}, {C}" if form == "T" else f"{MF16} {vr(acc,4)}, {xf}, {wf}, {C}")
                    if T == 0:
                        if f + LA < 32: g(xrd(f + LA))
                        elif f + LA - 32 < 4: g(f"v_add_u32 v{vXr+f+LA-32}, s{sT3}, v{vXr0+f+LA-32}")
                        if val: g(val.pop(0))
                    else:
                        if val: g(val.pop(0))
                        for x in second.get(f, []): g(x)
            g(f"s_and_b32 s{sT0}, s{sDstep}, s{sExE}")
            g(f"s_add_u32 s{sD0}, s{sD0}, s{sT0}")
            g(f"s_mov_b64 s[{sExE}:{sExE+1}], -1")
        g(f"s_cmp_lt_u32 s{sN}, s{sNseg}")
        g(f"s_cbranch_scc1 G_loop{form}")
        g(f"s_add_u32 s{sD1}, s{sD0}, s{sDdel}")
        for x in epilogue(form, ACC[1]) + stores(ACC[1]): g(x)
        if form == "T": g("s_branch G_end")
    g("G_end:")
    g("s_waitcnt vmcnt(0)")
    g("s_barrier")
    set_flag(g, sFlag, f"s{sNseg}", vF, one=True)
    tstamp(g, o, 2)
    return vSt

def gemm_setup(g, o, vSt):
    t0, t1, t2 = 81, 82, 83
    def lane_FL():
        g(f"""v_bfe_u32 v{t0}, v{vL}, 3, 1
        v_lshrrev_b32 v{t1}, 4, v{vL}
        v_and_b32 v{t2}, 7, v{vL}
        v_lshlrev_b32 v{vSt}, 9, v{t0}
        v_lshl_add_u32 v{vSt}, v{t1}, 7, v{vSt}
        v_lshl_add_u32 v{vSt}, v{t2}, 4, v{vSt}""")
    def ws_dst():
        for k in range(4): g(f"s_mov_b32 s{S_D+k}, s{S_WS+k}" if k < 3 else f"s_mov_b32 s{S_D+3}, 0x20000")
    g("W_entry:")
    g(f"""s_mov_b32 s{sPhase}, 1
    s_mov_b32 s{sNseg}, 32
    s_mov_b32 s{sXstep}, 65536
    s_and_b32 s{sT3}, s{sK}, 1
    s_lshl_b32 s{sXoff}, s{sT3}, 15
    s_mov_b32 s{sScale}, 1.0
    s_cmp_ge_u32 s{sK}, 216
    s_cbranch_scc1 FA_entry""")
    ws_dst()
    g(f"s_cmp_ge_u32 s{sK}, 192\ns_cbranch_scc1 W_a1")
    g(f"""s_lshr_b32 s{sT0}, s{sK}, 1
    s_mul_i32 s{sT1}, s{sT0}, 43691
    s_lshr_b32 s{sT1}, s{sT1}, 17
    s_mul_i32 s{sT2}, s{sT1}, 3
    s_sub_u32 s{sT2}, s{sT0}, s{sT2}
    s_lshl_b32 s{sWoff}, s{sT1}, 8
    s_mov_b32 s{sWstr}, 8192
    s_mov_b32 s{sPerm}, 0
    s_mov_b32 s{sDstep}, {2*262144}
    s_lshl_b32 s{sD0}, s{sT2}, 24
    s_lshl_b32 s{sT0}, s{sT1}, 13
    s_add_u32 s{sD0}, s{sD0}, s{sT0}
    s_lshl_b32 s{sT0}, s{sT3}, 18
    s_add_u32 s{sD0}, s{sD0}, s{sT0}
    s_lshl_b32 s{sFlag}, s{sT1}, 7
    s_lshl_b32 s{sT0}, s{sT2}, 3
    s_add_u32 s{sFlag}, s{sFlag}, s{sT0}
    s_lshl_b32 s{sT0}, s{sT3}, 2
    s_add_u32 s{sFlag}, s{sFlag}, s{sT0}
    s_add_u32 s{sFlag}, s{sFlag}, {FL_B}""")
    srd(g, S_X, 24, 2*MB_)
    lane_FL()
    g(f"s_cmp_eq_u32 s{sT2}, 2\ns_cbranch_scc1 W_bv")
    g(f"""s_mov_b32 s{sForm}, 0
    s_mov_b32 s{sDdel}, 4096
    s_lshl_b32 s{sT0}, s{sW}, 10
    s_add_u32 s{sD0}, s{sD0}, s{sT0}
    s_cmp_eq_u32 s{sT2}, 1
    s_cbranch_scc1 W_bk
    s_mov_b32 s{sScale}, {f32(CSCALE)}""")
    srd(g, S_WT, 40, 4*MB_); g("s_branch G_entry")
    g("W_bk:"); srd(g, S_WT, 48, 4*MB_); g("s_branch G_entry")
    g("W_bv:")
    g(f"""s_mov_b32 s{sForm}, 1
    s_mov_b32 s{sDdel}, 1024
    s_lshl_b32 s{sT0}, s{sW}, 11
    s_add_u32 s{sD0}, s{sD0}, s{sT0}""")
    srd(g, S_WT, 56, 4*MB_); g("s_branch G_entry")
    g("W_a1:")
    g(f"""s_sub_u32 s{sT0}, s{sK}, 192
    s_lshl_b32 s{sFlag}, s{sT0}, 2
    s_add_u32 s{sFlag}, s{sFlag}, {FL_A1}
    s_lshr_b32 s{sT0}, s{sT0}, 1
    s_lshl_b32 s{sWoff}, s{sT0}, 8
    s_mov_b32 s{sWstr}, 3072
    s_mov_b32 s{sDstep}, 2048
    s_lshl_b32 s{sD0}, s{sT0}, 19
    s_add_u32 s{sD0}, s{sD0}, {WS_AQ}
    s_lshl_b32 s{sT1}, s{sW}, 17
    s_add_u32 s{sD0}, s{sD0}, s{sT1}
    s_lshl_b32 s{sT1}, s{sT3}, 10
    s_add_u32 s{sD0}, s{sD0}, s{sT1}""")
    srd(g, S_X, 0, 2*MB_); srd(g, S_WT, 8, 512*3072)
    g(f"s_cmp_ge_u32 s{sT0}, 8\ns_cbranch_scc1 W_av")
    g(f"""s_mov_b32 s{sForm}, 0
    s_mov_b32 s{sPerm}, 1
    s_mov_b32 s{sDdel}, 128
    s_cmp_lt_u32 s{sT0}, 4
    s_cselect_b32 s{sScale}, {f32(ASCALE)}, 1.0
    v_lshrrev_b32 v{t0}, 5, v{vL}
    v_lshlrev_b32 v{vSt}, 16, v{t0}
    v_bfe_u32 v{t0}, v{vL}, 4, 1
    v_lshl_add_u32 v{vSt}, v{t0}, 9, v{vSt}
    v_bfe_u32 v{t0}, v{vL}, 3, 1
    v_lshl_add_u32 v{vSt}, v{t0}, 8, v{vSt}
    v_and_b32 v{t0}, 7, v{vL}
    v_lshl_add_u32 v{vSt}, v{t0}, 4, v{vSt}
    s_branch G_entry
    W_av:
    s_mov_b32 s{sForm}, 1
    s_mov_b32 s{sPerm}, 0
    s_mov_b32 s{sDdel}, 65536
    v_lshlrev_b32 v{vSt}, 4, v{vL}
    s_branch G_entry""")
    g("W_a3:")
    g(f"""s_mov_b32 s{sPhase}, 3
    s_mov_b32 s{sNseg}, 4
    s_mov_b32 s{sXstep}, 32768
    s_sub_u32 s{sT0}, s{sK}, 128
    s_and_b32 s{sT1}, s{sT0}, 3
    s_lshr_b32 s{sT0}, s{sT0}, 2
    s_lshl_b32 s{sXoff}, s{sT0}, 17
    s_add_u32 s{sXoff}, s{sXoff}, {WS_AO}
    s_mov_b32 s{sScale}, 1.0
    s_lshl_b32 s{sWoff}, s{sT1}, 8
    s_mov_b32 s{sWstr}, 1024
    s_mov_b32 s{sForm}, 0
    s_mov_b32 s{sPerm}, 1
    s_mov_b32 s{sDdel}, 32768
    s_mov_b32 s{sDstep}, 65536
    s_lshl_b32 s{sD0}, s{sT0}, 18
    s_add_u32 s{sD0}, s{sD0}, s{sWoff}
    s_lshl_b32 s{sT1}, s{sW}, 6
    s_add_u32 s{sD0}, s{sD0}, s{sT1}
    s_lshl_b32 s{sFlag}, s{sK}, 2
    s_add_u32 s{sFlag}, s{sFlag}, {FL_JUNK}
    v_and_b32 v{t0}, 15, v{vL}
    v_lshrrev_b32 v{t1}, 4, v{vL}
    v_lshlrev_b32 v{vSt}, 11, v{t0}
    v_lshl_add_u32 v{vSt}, v{t1}, 4, v{vSt}""")
    for k in range(4): g(f"s_mov_b32 s{S_X+k}, s{S_WS+k}" if k < 3 else f"s_mov_b32 s{S_X+3}, 0x20000")
    srd(g, S_WT, 16, 512*1024); srd(g, S_D, 80, 4*MB_)
    g("s_branch G_entry")

def gen_att(g, o):
    sHead, sPart, sQ0, sIt, sRetry, sVm = 24, 25, 26, 27, 28, 30
    Q = 0; KF = 12; VF = 20; P = 36; SB = 48; O = 80; C = 128; vK, vV, t0, t1, t2 = 176, 177, 178, 179, 180
    g("AT_entry:")
    g(f"""s_mul_i32 s{sHead}, s{sK}, 10923
    s_lshr_b32 s{sHead}, s{sHead}, 16
    s_mul_i32 s{sT0}, s{sHead}, 6
    s_sub_u32 s{sPart}, s{sK}, s{sT0}
    v_lshlrev_b32 v{t0}, 2, v{vL}
    v_cmp_gt_u32 vcc, 24, v{vL}
    v_cndmask_b32 v{t1}, 0, 32, vcc
    s_mov_b32 s{sT0}, {FL_A1}""")
    spin(g, "AT_w", t0, f"s{sT0}", t1, t2, one=True, sleep=16)
    tstamp(g, o, 3)
    g(f"""v_lshlrev_b32 v{vK}, 4, v{vL}
    s_lshl_b32 s{sT0}, s{sHead}, 16
    s_lshl_b32 s{sT1}, s{sW}, 10
    s_add_u32 s{sT0}, s{sT0}, s{sT1}
    s_add_u32 s{sT2}, s{sT0}, {WS_AK}
    s_add_u32 s{sT3}, s{sT0}, {WS_AV}
    s_barrier""")
    for m in range(16):
        g(f"""s_mov_b32 m0, s{sT1}
        s_nop 0
        buffer_load_dwordx4 v{vK}, {W}, s{sT2} offen sc1 lds
        s_add_u32 m0, s{sT1}, 65536
        s_add_u32 s{sT2}, s{sT2}, 4096
        buffer_load_dwordx4 v{vK}, {W}, s{sT3} offen sc1 lds
        s_add_u32 s{sT3}, s{sT3}, 4096
        s_add_u32 s{sT1}, s{sT1}, 4096""")
    g(f"""s_lshl_b32 s{sT0}, s{sPart}, 2
    s_add_u32 s{sT0}, s{sT0}, s{sW}
    s_mul_i32 s{sT1}, s{sT0}, 3
    s_lshl_b32 s{sT2}, s{sT0}, 1
    s_add_u32 s{sT2}, s{sT2}, 16
    s_cmp_lt_u32 s{sPart}, 4
    s_cselect_b32 s{sQ0}, s{sT1}, s{sT2}
    s_lshl_b32 s{sT0}, s{sHead}, 16
    s_lshl_b32 s{sT1}, s{sQ0}, 10
    s_add_u32 s{sT0}, s{sT0}, s{sT1}
    s_add_u32 s{sT0}, s{sT0}, {WS_AQ}""")
    for q in range(3): g(f"buffer_load_dwordx4 {vr(Q+4*q,4)}, v{vK}, {W}, s{sT0} offen offset:{1024*q} sc1")
    for k in range(16): g(f"v_mov_b32 v{VF+k}, 0x3f803f80")
    for k in range(0, 48, 2): g(f"v_mov_b64 {vr(C+k,2)}, 0")
    g(f"""s_mov_b32 s{sVm}, 0xffff
    s_mov_b32 s{sVm+1}, 0xffff
    s_mov_b32 s{sRetry}, {1 if False else 0}
    s_waitcnt vmcnt(0)
    s_barrier
    s_cmp_lt_u32 s{sPart}, 4
    s_cbranch_scc0 AT2_run""")
    def ex(r): return f"v_exp_f32 v{r}, v{r}"
    def krd(b, off): return f"ds_read_b128 {vr(KF+4*b,4)}, v{vK} offset:{off}"
    def vrd(b, off): return [f"s_mov_b64 exec, s[{sVm}:{sVm+1}]", f"ds_read_b128 {vr(VF+8*b,4)}, v{vV} offset:{off}",
                             f"ds_read_b128 {vr(VF+8*b+4,4)}, v{vV} offset:{off+512}", "s_mov_b64 exec, -1"]
    for NQ in (3, 2):
        N = f"AT{NQ}"
        g(f"{N}_run:")
        g(f"""v_lshlrev_b32 v{vK}, 4, v{vL}
        v_lshrrev_b32 v{t0}, 5, v{vL}
        v_and_b32 v{t1}, 15, v{vL}
        v_lshlrev_b32 v{vV}, 8, v{t0}
        v_lshl_add_u32 v{vV}, v{t1}, 4, v{vV}
        v_add_u32 v{vV}, 0x10000, v{vV}""")
        for k in range(0, 16*NQ, 2): g(f"v_mov_b64 {vr(O+k,2)}, 0")
        for k in range(4, 8, 2): g(f"v_mov_b64 {vr(P+k,2)}, 0")
        g(krd(0, 0))
        for x in vrd(0, 0) + vrd(1, 0): g(x)
        g(f"s_mov_b32 s{sIt}, 0")
        g("s_waitcnt lgkmcnt(0)")
        g(f"{MF32} {vr(SB,16)}, {vr(KF,4)}, {vr(Q,4)}, {vr(C,16)}")
        g(f"{N}_loop:")
        U = 2*NQ
        for u in range(U):
            b, q = divmod(u, NQ)
            S = SB + 16*(u & 1); S2 = SB + 16*((u+1) & 1)
            pb, pq = divmod((u - 1) % U, NQ)
            nb, nq = divmod((u + 1) % U, NQ)
            g(f"{MF32} {vr(O+16*pq,16)}, {vr(VF+8*pb+4,4)}, {vr(P+4,4)}, {vr(O+16*pq,16)}")
            if q == 0:
                g(krd(1-b, 1024*(b+1)))
                for x in vrd(1-b, 1024*(b+1)): g(x)
            for k in range(4): g(ex(S+k))
            if nq == 0: g("s_waitcnt lgkmcnt(0)")
            g(f"{MF32} {vr(S2,16)}, {vr(KF+4*nb,4)}, {vr(Q+4*nq,4)}, {vr(C+16*nq,16)}")
            for k in range(4, 8): g(ex(S+k))
            g(ex(S+8))
            for k in range(4): g(cvt(P+k, S+2*k, S+2*k+1))
            g(ex(S+9)); g(ex(S+10))
            g(f"{MF32} {vr(O+16*q,16)}, {vr(VF+8*b,4)}, {vr(P,4)}, {vr(O+16*q,16)}")
            for k in range(11, 16): g(ex(S+k))
            for k in range(4): g(cvt(P+4+k, S+8+2*k, S+8+2*k+1))
            if u == U - 1:
                g(f"v_add_u32 v{vK}, 2048, v{vK}\nv_add_u32 v{vV}, 2048, v{vV}")
            else: g("s_nop 1")
        g(f"""s_add_u32 s{sIt}, s{sIt}, 1
        s_cmp_lt_u32 s{sIt}, 32
        s_cbranch_scc1 {N}_loop""")
        g(f"{MF32} {vr(O+16*(NQ-1),16)}, {vr(VF+12,4)}, {vr(P+4,4)}, {vr(O+16*(NQ-1),16)}")
        g(f"s_cmp_eq_u32 s{sRetry}, 0\ns_cbranch_scc0 {N}_fin")
        g(f"v_subrev_u32 v{t0}, {(127-30) << 23}, v{O+8}")
        for q in range(1, NQ):
            g(f"v_subrev_u32 v{t1}, {(127-30) << 23}, v{O+16*q+8}\nv_max_u32 v{t0}, v{t0}, v{t1}")
        g(f"v_cmp_le_u32 vcc, {0 if o.force_slow else 90 << 23}, v{t0}")
        g(f"s_cbranch_vccz {N}_fin")
        g(f"s_mov_b32 s{sRetry}, 1\ns_mov_b32 s{sIt}, 0\nv_lshlrev_b32 v{vK}, 4, v{vL}")
        for q in range(NQ): g(f"v_mov_b32 v{O+q}, 0xff800000")
        g(f"{N}_max:")
        g(krd(0, 0)); g(f"v_add_u32 v{vK}, 1024, v{vK}"); g("s_waitcnt lgkmcnt(0)")
        for q in range(NQ):
            g(f"{MF32} {vr(SB,16)}, {vr(KF,4)}, {vr(Q+4*q,4)}, 0")
            for k in range(0, 16, 2): g(f"v_max3_f32 v{O+q}, v{O+q}, v{SB+k}, v{SB+k+1}")
        g(f"s_add_u32 s{sIt}, s{sIt}, 1\ns_cmp_lt_u32 s{sIt}, 64\ns_cbranch_scc1 {N}_max")
        for q in range(NQ):
            g(f"v_mov_b32 v{t0}, v{O+q}\nv_permlane32_swap_b32 v{O+q}, v{t0}\nv_max_f32 v{t0}, v{t0}, v{O+q}")
            for k in range(16): g(f"v_sub_f32 v{C+16*q+k}, 0, v{t0}")
        g(f"s_branch {N}_run")
        g(f"{N}_fin:")
        g(f"""v_bfe_u32 v{t0}, v{vL}, 3, 1
        v_lshlrev_b32 v{t1}, 14, v{t0}
        v_bfe_u32 v{t0}, v{vL}, 4, 1
        v_lshl_add_u32 v{t1}, v{t0}, 13, v{t1}
        v_and_b32 v{t0}, 7, v{vL}
        v_lshl_add_u32 v{t1}, v{t0}, 10, v{t1}
        v_lshrrev_b32 v{t0}, 5, v{vL}
        v_lshl_add_u32 v{t1}, v{t0}, 4, v{t1}
        s_lshl_b32 s{sT0}, s{sQ0}, 15
        s_lshl_b32 s{sT1}, s{sHead}, 5
        s_add_u32 s{sT0}, s{sT0}, s{sT1}
        s_add_u32 s{sT0}, s{sT0}, {WS_AO}""")
        for q in range(NQ):
            A = O + 16*q
            g(f"v_rcp_f32 v{t0}, v{A+8}")
            for k in range(8): g(f"v_mul_f32 v{A+k}, v{t0}, v{A+k}")
            for k in range(4): g(cvt(A+k, A+2*k, A+2*k+1))
            g(f"v_permlane32_swap_b32 v{A}, v{A+2}\nv_permlane32_swap_b32 v{A+1}, v{A+3}")
            g(f"buffer_store_dwordx4 {vr(A,4)}, v{t1}, {W}, s{sT0} offen sc1")
            g(f"s_add_u32 s{sT0}, s{sT0}, 32768")
        if NQ == 3: g("s_branch AT_end")
    g("AT_end:")
    g(f"""s_waitcnt vmcnt(0)
    s_barrier
    s_lshl_b32 s{sT0}, s{sK}, 2
    s_add_u32 s{sT0}, s{sT0}, {FL_A2}""")
    set_flag(g, sT0, 1, t0, one=True)
    tstamp(g, o, 4)

def gen_fa(g, o):
    sS, sBlk, sFl, sOut, sFo, sNn = 24, 25, 26, 27, 28, 29
    Q, K, V, KM, VM = 0, 32, 64, 96, 112
    SX = 128
    S00, S10, S11, SM0, SM1 = SX, SX+4, SX+8, SX+12, SX+16
    PX0, PX1, PM0, PM1 = 148, 152, 156, 158
    L0, L1, ONES, DM, MM, O = 160, 164, 168, 172, 176, 180
    vFL, vFa, vR1, vR2, vEx, vXr, vVm, t0, t1, t2, KR = 200, 201, 202, 203, 204, 205, 206, 207, 208, 209, 212
    M16 = "v_mfma_f32_16x16x16_bf16"
    g("FA_entry:")
    wait_init(g, "FA_init", t0, one=True)
    i, gg = t1, t2
    g(f"""s_sub_u32 s{sH}, s{sK}, 192
    v_and_b32 v{i}, 15, v{vL}
    v_lshrrev_b32 v{gg}, 4, v{vL}
    v_bfe_u32 v{t0}, v{vL}, 3, 1
    v_lshlrev_b32 v{vFL}, 9, v{t0}
    v_lshl_add_u32 v{vFL}, v{gg}, 7, v{vFL}
    v_and_b32 v{t0}, 7, v{vL}
    v_lshl_add_u32 v{vFL}, v{t0}, 4, v{vFL}
    v_lshlrev_b32 v{vFa}, 2, v{i}
    v_lshlrev_b32 v{vEx}, 4, v{vL}
    v_and_b32 v{t0}, 1, v{gg}
    v_mul_u32_u24 v{vVm}, {XPL}, v{t0}
    v_lshl_add_u32 v{vVm}, v{i}, 3, v{vVm}
    v_and_b32 v{t0}, 1, v{vL}
    v_mul_u32_u24 v{vXr}, {XPL}, v{t0}
    v_lshl_add_u32 v{vXr}, v{gg}, 5, v{vXr}
    v_bfe_u32 v{t0}, v{vL}, 2, 2
    v_lshl_add_u32 v{vXr}, v{t0}, 3, v{vXr}
    s_lshl_b32 s{sT0}, s{sW}, 12
    v_add_u32 v{vXr}, s{sT0}, v{vXr}
    v_mov_b32 v{KR}, {NEGBIG}
    v_cmp_lt_u32 vcc, 1, v{gg}
    v_lshlrev_b32 v{t0}, 2, v{gg}""")
    for k in range(4): g(f"v_cndmask_b32 v{MM+k}, 0, v{KR}, vcc")
    for k in range(4):
        g(f"v_cmp_gt_u32 vcc, v{t0}, v{i}\nv_cndmask_b32 v{DM+k}, 0, v{KR}, vcc\nv_add_u32 v{t0}, 1, v{t0}")
        g(f"v_mov_b32 v{ONES+k}, 0x3f803f80")
    g(f"v_mov_b64 {vr(PX0+2,2)}, 0")
    sM1, sM2 = 30, 32
    g(f"""s_and_b32 s{sT0}, s{sW}, 1
    s_lshl_b32 s{sM1}, 0x15, s{sT0}
    s_mov_b32 s{sM1+1}, 0
    s_mov_b64 s[{sM2}:{sM2+1}], 0xf00
    s_lshl_b32 s{sFl}, s{sH}, 7
    s_add_u32 s{sFl}, s{sFl}, {FL_B}
    s_lshl_b32 s{sFo}, s{sW}, 7
    s_lshl_b32 s{sT0}, s{sH}, 2
    s_add_u32 s{sFo}, s{sFo}, s{sT0}
    s_add_u32 s{sFo}, s{sFo}, {FL_FA}
    s_mov_b32 s{sS}, s{sW}
    s_mov_b32 s{sNn}, 0
    s_barrier""")
    g("FA_loop:")
    g(f"""s_lshr_b32 s{sT0}, s{sS}, 1
    s_add_u32 s{sT0}, s{sT0}, 1
    v_mov_b32 v{t0}, s{sT0}
    v_cndmask_b32 v{vR1}, 0, v{t0}, s[{sM1}:{sM1+1}]
    s_add_u32 s{sT0}, s{sS}, 1
    v_mov_b32 v{t0}, s{sT0}
    v_cndmask_b32 v{vR2}, 0, v{t0}, s[{sM2}:{sM2+1}]
    s_lshl_b32 s{sBlk}, s{sS}, 18
    s_lshl_b32 s{sT0}, s{sH}, 12
    s_add_u32 s{sOut}, s{sBlk}, s{sT0}
    s_add_u32 s{sBlk}, s{sOut}, s{sT0}
    s_add_u32 s{sOut}, s{sOut}, {WS_OX}""")
    spin(g, "FA_w1", vFa, f"s{sFl}", vR1, t0)
    for base, ws in ((Q, WS_QX), (K, WS_KX), (V, WS_VX)):
        g(f"s_add_u32 s{sT0}, s{sBlk}, {ws}\ns_add_u32 s{sT1}, s{sT0}, 4096")
        for n in range(8): g(f"buffer_load_dwordx4 {vr(base+4*n,4)}, v{vFL}, {W}, s{sT0 if n < 4 else sT1} offen offset:{1024*(n&3)} sc1")
    g("s_waitcnt vmcnt(8)")
    for D, kt, qt, C0 in ((S00, 0, 0, vr(DM,4)), (S10, 0, 1, "0"), (S11, 1, 1, vr(DM,4))):
        for b in range(4): g(f"{MF16} {vr(D,4)}, {vr(K+16*kt+4*b,4)}, {vr(Q+16*qt+4*b,4)}, {C0 if b == 0 else vr(D,4)}")
    spin(g, "FA_w2", vFa, f"s{sFl}", vR2, t0)
    g(f"s_add_u32 s{sT0}, s{sBlk}, {WS_EX}")
    g(f"buffer_load_dwordx4 {vr(KR,4)}, v{vEx}, {W}, s{sT0} offen sc1")
    g(f"buffer_load_dwordx4 {vr(KR+4,4)}, v{vEx}, {W}, s{sT0} offen offset:{XPL} sc1")
    for et in range(8): g(f"buffer_load_dwordx2 {vr(VM+2*et,2)}, v{vVm}, {W}, s{sT0} offen offset:{2*XPL+128*et} sc1")
    g(f"s_lshl_b32 s{sT0}, s{sW}, 12\nv_add_u32 v{t0}, s{sT0}, v{vEx}")
    g("s_waitcnt vmcnt(8)")
    g(f"ds_write_b128 v{t0}, {vr(KR,4)}\nds_write_b128 v{t0}, {vr(KR+4,4)} offset:{XPL}")
    g("s_waitcnt lgkmcnt(0)")
    for b in range(4):
        for x in range(2): g(f"ds_read_b64_tr_b16 {vr(KM+4*b+2*x,2)}, v{vXr} offset:{(32*b+16*x)*8}")
    g("s_waitcnt lgkmcnt(0)")
    for D, qt in ((SM0, 0), (SM1, 1)):
        for b in range(4): g(f"{MF16} {vr(D,4)}, {vr(KM+4*b,4)}, {vr(Q+16*qt+4*b,4)}, {vr(MM,4) if b == 0 else vr(D,4)}")
    for qt, regs in ((0, [S00+k for k in range(4)] + [SM0+k for k in range(4)]), (1, [S10+k for k in range(8)] + [SM1+k for k in range(4)])):
        g(f"v_max3_f32 v{t0}, v{regs[0]}, v{regs[1]}, v{regs[2]}")
        for k in range(3, len(regs)-1, 2): g(f"v_max3_f32 v{t0}, v{t0}, v{regs[k]}, v{regs[k+1]}")
        g(f"v_max_f32 v{t0}, v{t0}, v{regs[-1]}")
        for sw in ("v_permlane32_swap_b32", "v_permlane16_swap_b32"):
            g(f"v_mov_b32 v{t1}, v{t0}\n{sw} v{t0}, v{t1}\nv_max_f32 v{t0}, v{t0}, v{t1}")
        for r in regs: g(f"v_sub_f32 v{r}, v{r}, v{t0}")
        for r in regs: g(f"v_exp_f32 v{r}, v{r}")
        px, pm = (PX0, PM0) if qt == 0 else (PX1, PM1)
        for k in range((len(regs) - 4) // 2): g(cvt(px+k, regs[2*k], regs[2*k+1]))
        for k in range(2): g(cvt(pm+k, regs[-4+2*k], regs[-3+2*k]))
        L = (L0, L1)[qt]
        g(f"{MF16} {vr(L,4)}, {vr(ONES,4)}, {vr(px,4)}, 0")
        g(f"{M16} {vr(L,4)}, {vr(ONES,2)}, {vr(pm,2)}, {vr(L,4)}")
    g("s_waitcnt vmcnt(0)")
    g(f"v_rcp_f32 v{L0}, v{L0}\nv_rcp_f32 v{L1}, v{L1}")
    units = [(qt, b) for qt in range(2) for b in range(4)]
    def pv(n):
        qt, b = units[n]; A = O + 8*(n & 1)
        px, pm = (PX0, PM0) if qt == 0 else (PX1, PM1)
        for T in range(2): g(f"{MF16} {vr(A+4*T,4)}, {vr(V+4*(2*b+T),4)}, {vr(px,4)}, 0")
        for T in range(2): g(f"{M16} {vr(A+4*T,4)}, {vr(VM+2*(2*b+T),2)}, {vr(pm,2)}, {vr(A+4*T,4)}")
    pv(0)
    for n, (qt, b) in enumerate(units):
        A = O + 8*(n & 1); Z = Q + 4*n
        if n + 1 < 8: pv(n + 1)
        for k in range(8): g(f"v_mul_f32 v{A+k}, v{(L0, L1)[qt]}, v{A+k}")
        for k in range(4): g(cvt(Z+k, A+2*k, A+2*k+1))
        if n == 4: g(f"s_add_u32 s{sOut}, s{sOut}, 131072")
        g(f"buffer_store_dwordx4 {vr(Z,4)}, v{vEx}, {W}, s{sOut} offen offset:{1024*b} sc1")
    g(f"s_add_u32 s{sNn}, s{sNn}, 1\ns_add_u32 s{sS}, s{sS}, 4")
    g("s_waitcnt vmcnt(0)")
    set_flag(g, sFo, f"s{sNn}", t0)
    g(f"s_cmp_lt_u32 s{sNn}, 16\ns_cbranch_scc1 FA_loop")
    tstamp(g, o, 5)
    g("s_endpgm")

def gen_fg(g, o, NG=8):
    S_WO, S_OUT = 24, 28
    sIt, sCg, sPar = 32, 33, 34
    XF = 0; A = 128; R = 136; vEx, vFa, vRq, vSt, vLw, t0, t1, t2 = 160, 161, 162, 163, 164, 165, 166, 167
    g("FG_entry:")
    srd(g, S_WO, 64, 4*MB_); srd(g, S_OUT, 80, 4*MB_)
    g(f"""s_and_b32 s{sCg}, s{sK}, 15
    s_lshr_b32 s{sIt}, s{sK}, 4
    v_lshrrev_b32 v{t0}, 2, v{vL}
    v_and_b32 v{t1}, 3, v{vL}
    v_lshlrev_b32 v{t2}, 10, v{t0}
    v_lshl_add_u32 v{t2}, v{t1}, 4, v{t2}
    v_lshlrev_b32 v{vEx}, 4, v{vL}
    s_lshl_b32 s{sT3}, s{sW}, 15
    v_add_u32 v{t0}, s{sT3}, v{vEx}
    s_lshl_b32 s{sT0}, s{sW}, 20
    s_lshl_b32 s{sT1}, s{sCg}, 6
    s_add_u32 s{sT0}, s{sT0}, s{sT1}
    s_waitcnt lgkmcnt(0)
    s_barrier""")
    for ps in range(2):
        for m in range(32):
            g(f"""s_add_u32 m0, s{sT3}, {1024*m}
            s_nop 0
            buffer_load_dwordx4 v{t2}, s[{S_WO}:{S_WO+3}], s{sT0} offen lds
            s_add_u32 s{sT0}, s{sT0}, 16384""")
        g("s_waitcnt vmcnt(0)")
        for ks in range(16):
            for T in range(2):
                for hh in range(2):
                    g(f"ds_read_b64_tr_b16 {vr(((16*ps+ks)*2+T)*4+2*hh, 2, 'a')}, v{t0} offset:{(32*ks+16*hh)*64 + 8*T}")
            if ks % 2 == 1: g("s_waitcnt lgkmcnt(0)")
    g(f"""v_and_b32 v{t0}, 7, v{vL}
    s_lshl_b32 s{sT0}, s{sW}, 3
    v_add_u32 v{t0}, s{sT0}, v{t0}
    v_lshlrev_b32 v{vFa}, 2, v{t0}
    v_and_b32 v{t0}, 15, v{vL}
    v_lshrrev_b32 v{t1}, 4, v{vL}
    v_lshlrev_b32 v{vSt}, 11, v{t0}
    v_lshl_add_u32 v{vSt}, v{t1}, 4, v{vSt}
    s_lshl_b32 s{sT0}, s{sW}, 11
    v_add_u32 v{vLw}, s{sT0}, v{vEx}
    s_mov_b32 s{sPar}, 0
    s_barrier""")
    tstamp(g, o, 5)
    g("FG_loop:")
    g(f"""s_lshr_b32 s{sT0}, s{sIt}, 3
    s_add_u32 s{sT0}, s{sT0}, 1
    v_mov_b32 v{vRq}, s{sT0}
    s_lshr_b32 s{sT0}, s{sIt}, 1
    s_and_b32 s{sT0}, s{sT0}, 3
    s_lshl_b32 s{sT0}, s{sT0}, 7
    s_add_u32 s{sT0}, s{sT0}, {FL_FA}""")
    spin(g, "FG_w", vFa, f"s{sT0}", vRq, t0)
    g(f"""s_lshl_b32 s{sT0}, s{sIt}, 17
    s_lshl_b32 s{sT1}, s{sW}, 15
    s_add_u32 s{sT0}, s{sT0}, s{sT1}
    s_add_u32 s{sT0}, s{sT0}, {WS_OX}""")
    for n in range(32):
        g(f"buffer_load_dwordx4 {vr(XF+4*n,4)}, v{vEx}, {W}, s{sT0} offen offset:{1024*(n&3)} sc1")
        if n % 4 == 3: g(f"s_add_u32 s{sT0}, s{sT0}, 4096")
    for n in range(32):
        g(f"s_waitcnt vmcnt({31-n})")
        for T in range(2): g(f"{MF16} {vr(A+4*T,4)}, {vr((2*n+T)*4,4,'a')}, {vr(XF+4*n,4)}, {vr(A+4*T,4) if n else 0}")
    g(f"v_add_u32 v{t0}, s{sPar}, v{vLw}\nv_add_u32 v{t1}, s{sPar}, v{vEx}")
    g(f"ds_write_b128 v{t0}, {vr(A,4)}\nds_write_b128 v{t0}, {vr(A+4,4)} offset:1024")
    g(f"""s_waitcnt lgkmcnt(0)
    s_barrier
    s_cmp_eq_u32 s{sW}, 0
    s_cbranch_scc0 FG_next""")
    for k in range(6): g(f"ds_read_b128 {vr(R+4*k,4)}, v{t1} offset:{2048+1024*k}")
    g(f"""s_lshl_b32 s{sT0}, s{sIt}, 15
    s_lshl_b32 s{sT1}, s{sCg}, 6
    s_add_u32 s{sT0}, s{sT0}, s{sT1}
    s_waitcnt lgkmcnt(0)""")
    for w_ in range(3):
        for k in range(8): g(f"v_add_f32 v{A+k}, v{A+k}, v{R+8*w_+k}")
    for k in range(4): g(cvt(R+k, A+2*k, A+2*k+1))
    g(f"buffer_store_dwordx4 {vr(R,4)}, v{vSt}, s[{S_OUT}:{S_OUT+3}], s{sT0} offen offset:1024")
    g(f"""FG_next:
    s_xor_b32 s{sPar}, s{sPar}, 8192
    s_add_u32 s{sIt}, s{sIt}, {NG}
    s_cmp_lt_u32 s{sIt}, 128
    s_cbranch_scc1 FG_loop""")
    tstamp(g, o, 6)
    g("s_endpgm")
```

```python
import sys, math
from asmgen import *

from cfg import *
import roles

class Opt:
    nsteps = 64
    prof = 0
    ronly = 0
    dbg_m = False
    stamps = False
    rdelay = 20
    b0 = 1
    force_slow = 0
    nofar = 0
    noexp = 0
    pdelay = 12
    pgap = 0
    sel = []
    rgap = 0
    uspread = 1
    rt = 0
    noreset = 0
    rs = 8192
    rwait = 2

def gen_R(g, o):
    vQ, vIdx, vMrd, vXwr, vXrd, vKrd, vOwr, vWo, vJ, vPst, vMst, vMask = range(12)
    V = 12; AQ, AK, AV = 20, 24, 28; KX = 32; MF = 64
    def M(t): return MF + 4*t
    T = MF
    TMP1 = MF + 32
    perm = [("q",1),("q",2),("q",3),("k",0),("k",1),("k",2),("v",0),("v",1),("v",2),("v",3),("o",0),("o",1)]
    loc = {key: (("a", 32*n) if n < 8 else ("v", 128 + 32*(n-8))) for n, key in enumerate(perm)}
    ploc = dict(loc); ploc[("q",0)] = ("v", KX); ploc[("k",3)] = ("v", TMP1)
    slot = {("q",0): 0, ("k",3): 1, ("o",2): 2, ("o",3): 3}
    order = [(m, c) for m in "qkvo" for c in range(4)]
    def wfrag(mat, r, f):
        k, b = loc[(mat, r)]
        return vr(b + 8*f, 8, k)
    sT0, sT1, sT2, sT3 = 20, 21, 22, 23
    sPw, sPh, sExw, sMr, sMw, sMz, sKV, sEx, sRange, sM0k = 24, 25, 26, 27, 28, 29, 30, 31, 32, 33
    sO1, sO2, sO3, sMoff = 34, 35, 36, 37
    sMaskOdd, sMaskD, sMaskLo8 = 38, 40, 48
    sC, sPoff, sRoff = 50, 51, 3
    sVc, sFlB, sKn, sVn, sFailA, sFlE, sReq = 52, 53, 54, 55, 56, 57, 58
    S_Q, S_K, S_V, S_O = 52, 56, 60, 64
    sSt = 68
    W = f"s[{S_WS}:{S_WS+3}]"
    g("R_entry:")
    srd(g, S_Q, 40, 4*MB_); srd(g, S_K, 48, 4*MB_); srd(g, S_V, 56, 4*MB_); srd(g, S_O, 64, 4*MB_)
    srd(g, S_A, 32, 8192)
    g(f"""v_and_b32 v{T}, 63, v0
    v_and_b32 v{T+1}, 15, v0
    v_lshrrev_b32 v{T+2}, 4, v{T}
    v_lshrrev_b32 v{T+3}, 2, v{T+1}
    v_and_b32 v{T+4}, 3, v0""")
    l, i, gg, a, c = T, T+1, T+2, T+3, T+4
    vDq, vDo, vTq, vTo, t0, t1, t2, vTT = T+5, T+6, T+7, T+8, T+9, T+10, T+11, T+16
    g(f"""s_and_b32 s{sT0}, s{sW}, 1
    s_lshl_b32 s{sT0}, s{sT0}, 3
    v_and_b32 v{t0}, 1, v{gg}
    v_lshlrev_b32 v{t0}, 2, v{t0}
    v_or_b32 v{t0}, s{sT0}, v{t0}
    v_xor_b32 v{t0}, v{t0}, v{i}
    v_lshlrev_b32 v{t0}, 4, v{t0}
    v_lshl_add_u32 v{vDq}, v{gg}, 13, v{t0}
    s_lshl_b32 s{sT0}, s{sW}, 15
    v_add_u32 v{vDq}, s{sT0}, v{vDq}""")
    g(f"""s_and_b32 s{sT0}, s{sW}, 1
    s_lshr_b32 s{sT1}, s{sW}, 1
    s_lshl_b32 s{sT1}, s{sT1}, 4
    s_add_u32 s{sT3}, s{sT0}, s{sT1}
    s_lshl_b32 s{sT3}, s{sT3}, 10
    s_lshl_b32 s{sT0}, s{sW}, 2
    v_xor_b32 v{vDo}, s{sT0}, v{l}
    v_lshlrev_b32 v{vDo}, 4, v{vDo}
    v_add_u32 v{vDo}, s{sT3}, v{vDo}""")
    g("s_waitcnt lgkmcnt(0)")
    def dma_chunk(n):
        mat, cc = order[n]
        base = L_W + (n & 3) * 32768
        if mat != "o":
            S = {"q": S_Q, "k": S_K, "v": S_V}[mat]
            g(f"s_lshl_b32 s{sT0}, s{sH}, 8")
            g(f"s_add_u32 s{sT0}, s{sT0}, {(64*(cc>>1) + 16*(cc&1))*8192}")
            g(f"s_lshl_b32 s{sT1}, s{sW}, 10")
            g(f"s_add_u32 s{sT1}, s{sT1}, {base}")
            for mm in range(8):
                g(f"s_mov_b32 m0, s{sT1}")
                g(f"s_add_u32 s{sT1}, s{sT1}, 4096")
                g(f"buffer_load_dwordx4 v{vDq}, s[{S}:{S+3}], s{sT0} offen lds")
                g(f"s_add_u32 s{sT0}, s{sT0}, {(32 if mm % 2 == 0 else 96)*8192}")
        else:
            g(f"v_add_u32 v{t0}, {cc}, v{gg}")
            g(f"v_and_b32 v{t0}, 3, v{t0}")
            g(f"v_lshl_add_u32 v{t0}, v{t0}, 15, v{vDo}")
            g(f"s_lshl_b32 s{sT0}, s{sH}, 17")
            g(f"s_add_u32 s{sT1}, s{sT3}, {base}")
            for mm in range(8):
                g(f"s_mov_b32 m0, s{sT1}")
                g(f"s_add_u32 s{sT1}, s{sT1}, 2048")
                g(f"buffer_load_dwordx4 v{t0}, s[{S_O}:{S_O+3}], s{sT0} offen lds")
                g(f"s_add_u32 s{sT0}, s{sT0}, 2048")
    dma_chunk(0)
    ih = T+17; i7 = T+18; gh = T+19; gl = T+20
    g(f"""v_lshrrev_b32 v{ih}, 3, v{i}
    v_and_b32 v{i7}, 7, v{i}
    v_lshrrev_b32 v{gh}, 1, v{gg}
    v_and_b32 v{gl}, 1, v{gg}
    v_lshlrev_b32 v{vKrd}, 4, v{l}
    v_lshlrev_b32 v{t0}, 4, v{i7}
    v_lshl_add_u32 v{vMrd}, v{gg}, 7, v{t0}
    v_lshl_add_u32 v{vQ}, v{ih}, 9, v{vMrd}
    s_lshl_b32 s{sT0}, s{sW}, 11
    v_add_u32 v{vQ}, s{sT0}, v{vQ}
    v_cmp_gt_u32 s[{sMaskLo8}:{sMaskLo8+1}], 8, v{i}
    v_mov_b32 v{t0}, 0xeeeeeeee
    v_mov_b32 v{t1}, 0x44444444
    v_cndmask_b32 v{vIdx}, v{t0}, v{t1}, s[{sMaskLo8}:{sMaskLo8+1}]
    v_lshl_add_u32 v{vOwr}, v{ih}, 3, v{vMrd}
    s_lshl_b32 s{sT0}, s{sW}, 9
    v_add_u32 v{vOwr}, s{sT0}, v{vOwr}
    v_lshl_add_u32 v{vXwr}, v{gh}, 4, v{i}
    v_lshlrev_b32 v{vXwr}, 3, v{vXwr}
    v_mul_u32_u24 v{t0}, {XPL}, v{gl}
    v_add_u32 v{vXwr}, v{vXwr}, v{t0}
    s_lshl_b32 s{sT0}, s{sW}, 8
    v_add_u32 v{vXwr}, s{sT0}, v{vXwr}
    v_mul_u32_u24 v{vPst}, {4*o.rs if o.uspread else o.rs}, v{gh}
    v_mul_u32_u24 v{t0}, {2*o.rs if o.uspread else 4096}, v{ih}
    v_add_u32 v{vPst}, v{t0}, v{vPst}
    v_mul_u32_u24 v{t0}, {o.rs if o.uspread else 2048}, v{gl}
    v_add_u32 v{vPst}, v{t0}, v{vPst}
    v_lshl_add_u32 v{vPst}, v{i7}, 3, v{vPst}
    s_mul_i32 s{sT0}, s{sW}, {8*o.rs}
    v_add_u32 v{vPst}, s{sT0}, v{vPst}
    s_mul_i32 s{sRoff}, s{sH}, {o.rs}
    v_lshlrev_b32 v{vMst}, 4, v{gg}
    v_lshl_add_u32 v{vMst}, v{c}, 2, v{vMst}
    s_lshl_b32 s{sT0}, s{sW}, {9 if o.uspread else 6}
    v_add_u32 v{vMst}, s{sT0}, v{vMst}
    v_lshl_add_u32 v{vXrd}, v{gg}, 2, v{a}
    v_lshlrev_b32 v{vXrd}, 3, v{vXrd}
    v_mul_u32_u24 v{t0}, {XPL}, v{c}
    v_add_u32 v{vXrd}, v{vXrd}, v{t0}
    s_lshl_b32 s{sT0}, s{sW}, 13
    s_add_u32 s{sT0}, s{sT0}, {L_W}
    v_add_u32 v{vWo}, s{sT0}, v{vKrd}
    v_mov_b32 v{t0}, 0xf149f2ca
    v_cmp_gt_u32 vcc, 2, v{gg}
    v_cndmask_b32 v{vMask}, 0, v{t0}, vcc
    v_and_b32 v{t0}, 1, v{a}
    v_cmp_eq_u32 s[{sMaskOdd}:{sMaskOdd+1}], 1, v{t0}
    v_lshrrev_b32 v{t0}, 1, v{a}
    v_lshl_add_u32 v{t0}, v{c}, 1, v{t0}""")
    for d in range(4):
        g(f"v_cmp_eq_u32 s[{sMaskD+2*d}:{sMaskD+2*d+1}], {d}, v{t0}")
    for r, s_ in ((1, sO1), (2, sO2), (3, sO3)):
        g(f"s_add_u32 s{s_}, s{sW}, {r}\ns_and_b32 s{s_}, s{s_}, 3\ns_lshl_b32 s{s_}, s{s_}, 9")
    g(f"s_mov_b32 s{sC}, {f32(CSCALE)}")
    g(f"s_lshl_b32 s{sPoff}, s{sH}, 6")
    if o.uspread:
        g(f"""s_lshr_b32 s{sT0}, s{sH}, 3
        s_lshl_b32 s{sMoff}, s{sT0}, 11
        s_and_b32 s{sT0}, s{sH}, 7
        s_lshl_b32 s{sT0}, s{sT0}, 6
        s_add_u32 s{sMoff}, s{sMoff}, s{sT0}""")
    else:
        g(f"s_lshl_b32 s{sMoff}, s{sH}, 8")
    g(f"""v_and_b32 v{t0}, 1, v{a}
    v_lshl_add_u32 v{t2}, v{gl}, 1, v{t0}
    v_lshrrev_b32 v{vTT}, 1, v{a}
    v_lshlrev_b32 v{vTq}, 5, v{vTT}
    v_lshl_add_u32 v{vTq}, v{c}, 3, v{vTq}
    v_lshl_add_u32 v{vTo}, v{t2}, 6, v{vTq}
    v_xor_b32 v{t2}, s{sW}, v{t2}
    v_lshl_add_u32 v{vTq}, v{t2}, 6, v{vTq}
    v_lshl_add_u32 v{vTq}, v{t0}, 8, v{vTq}
    v_lshl_add_u32 v{vTq}, v{gg}, 10, v{vTq}
    v_lshl_add_u32 v{vTo}, v{t0}, 10, v{vTo}
    v_lshl_add_u32 v{vTo}, v{gl}, 14, v{vTo}
    v_lshl_add_u32 v{vTo}, v{gh}, 12, v{vTo}
    s_lshl_b32 s{sT0}, s{sW}, 8
    v_add_u32 v{vTo}, s{sT0}, v{vTo}""")
    SN = T+12
    for k in range(4): g(f"v_mov_b32 v{SN+k}, -1")
    g(f"s_add_u32 s{sT0}, s{sRoff}, {WS_PART}")
    for k in range(4): g(f"v_not_b32 v{T+24+k}, v{a}")
    for hf in range(2):
        g(f"buffer_store_dwordx4 {vr(T+24,4)}, v{vQ}, {W}, s{sT0} offen offset:{1024*hf} sc1")
    g(f"s_add_u32 s{sT0}, s{sMoff}, {WS_M}")
    for sl in range(4):
        g(f"buffer_store_dword v{SN}, v{vMst}, {W}, s{sT0} offen sc1")
        g(f"s_add_u32 s{sT0}, s{sT0}, 8192")
    g(f"""v_mov_b32 v{t0}, 0
    v_lshlrev_b32 v{t1}, 2, v{l}
    s_lshl_b32 s{sT0}, s{sH}, 8
    s_add_u32 s{sT0}, s{sT0}, {WS_FL}""")
    if not o.ronly: g(f"buffer_store_dword v{t0}, v{t1}, {W}, s{sT0} offen sc1")
    for n in range(1, 4): dma_chunk(n)
    g(f"s_add_u32 s{sMoff}, s{sMoff}, {WS_M}\ns_add_u32 s{sRoff}, s{sRoff}, {WS_PART}\ns_add_u32 s{sPoff}, s{sPoff}, {WS_PART}")
    for n in range(16):
        mat, cc = order[n]
        base = L_W + (n & 3) * 32768
        rem = min(3, 15 - n) * 8
        g(f"s_waitcnt vmcnt({rem})")
        g("s_barrier")
        if n == 0:
            g(f"""s_cmp_eq_u32 s{sW}, 0
            s_cbranch_scc0 R_noinit
            v_mov_b32 v{t0}, 4
            v_mov_b32 v{t1}, 1
            s_mov_b64 exec, 1
            buffer_atomic_add v{t1}, v{t0}, s[{S_DBG}:{S_DBG+3}], 0 offen
            s_mov_b64 exec, -1
            R_noinit:""")
        if mat == "o":
            k, b = loc[(mat, cc)] if cc < 2 else ("v", KX)
            for u in range(4):
                if cc == 0:
                    g(f"v_mul_u32_u24 v{t0}, {16384+128}, v{vTT}")
                    g(f"v_xor_b32 v{t0}, v{t0}, v{vTo}")
                    g(f"v_xor_b32 v{t0}, {64*u}, v{t0}")
                else:
                    g(f"v_xor_b32 v{t0}, {64*u}, v{vTo}")
                g(f"v_add_u32 v{t0}, {base}, v{t0}")
                for hh in range(2):
                    for dd in range(2):
                        g(f"ds_read_b64_tr_b16 {vr(b + 8*u + 4*hh + 2*dd, 2, k)}, v{t0} offset:{(8*hh + 2*dd)*1024}")
                if u == 1: g("s_waitcnt lgkmcnt(0)")
        else:
            mm_, hh = cc >> 1, cc & 1
            for r in range(4):
                k, b = ploc[(mat, r)]
                if r == 0: g(f"s_lshl_b32 s{sT0}, s{sW}, 13")
                else: g(f"s_lshl_b32 s{sT0}, s{(sO1,sO2,sO3)[r-1]}, 4")
                g(f"s_add_u32 s{sT0}, s{sT0}, {base}")
                g(f"v_add_u32 v{t0}, s{sT0}, v{vTq}")
                if r == 0:
                    g(f"v_lshl_add_u32 v{t0}, v{vTT}, 12, v{t0}")
                    g(f"v_xor_b32 v{t1}, 4096, v{t0}")
                for x in range(2):
                    for dd in range(2):
                        ad, off = (t0, 4096*x + 512*dd) if r else ((t0, t1)[x], 512*dd)
                        g(f"ds_read_b64_tr_b16 {vr(b + 8*(2*mm_+x) + 4*hh + 2*dd, 2, k)}, v{ad} offset:{off}")
                if r == 1: g("s_waitcnt lgkmcnt(0)")
        g("s_waitcnt lgkmcnt(0)")
        g("s_barrier")
        if n < 12:
            dma_chunk(n + 4)
        else:
            src = {12: KX, 13: TMP1, 14: KX, 15: KX}[n]
            g(f"v_add_u32 v{t0}, {(n&3)*32768}, v{vWo}")
            for f in range(8):
                g(f"ds_write_b128 v{t0}, {vr(src+4*f,4)} offset:{1024*f}")
            g("s_waitcnt lgkmcnt(0)")
    def lds_w(mat, cc, f, hf):
        return slot[(mat, cc)]*32768 + f*2048 + hf*1024
    roles.tstamp(g, o, 1, t0)
    roles.wait_init(g, "R_init", t0)
    g(f"""s_lshl_b32 s{sFlB}, s{sH}, 7
    s_add_u32 s{sFlB}, s{sFlB}, {FL_B + 8}
    s_lshl_b32 s{sT0}, s{sW}, 2
    s_add_u32 s{sFlE}, s{sFlB}, s{sT0}
    s_add_u32 s{sFlE}, s{sFlE}, 24
    v_lshlrev_b32 v{t0}, 2, v{c}
    v_mov_b32 v{t1}, 1""")
    roles.spin(g, "R_kv0", t0, f"s{sFlB}", t1, t2)
    roles.tstamp(g, o, 2, t0)
    g(f"""v_lshl_add_u32 v{t0}, v{ih}, 2, v{gg}
    v_lshlrev_b32 v{t0}, 4, v{t0}
    v_lshl_add_u32 v{vJ}, v{i7}, 10, v{t0}
    s_lshl_b32 s{sT0}, s{sW}, 8
    buffer_load_dwordx4 {vr(M(0),4)}, v{vJ}, s[{S_A}:{S_A+3}], s{sT0} offen
    buffer_load_dwordx4 {vr(M(2),4)}, v{vJ}, s[{S_A}:{S_A+3}], s{sT0} offen offset:128
    s_lshl_b32 s{sKV}, s{sH}, 13
    s_add_u32 s{sT0}, s{sKV}, {WS_KX}
    s_lshl_b32 s{sM0k}, s{sW}, 11
    s_mov_b32 m0, s{sM0k}
    s_nop 0
    buffer_load_dwordx4 v{vQ}, {W}, s{sT0} offen sc1 lds
    buffer_load_dwordx4 v{vQ}, {W}, s{sT0} offen offset:1024 sc1 lds
    s_mov_b32 s{sStep}, 0
    s_mov_b32 s{sFailA}, 0
    s_lshl_b32 s{sT0}, s{sW}, 10
    s_sub_u32 s{sExw}, {WS_EX}, s{sT0}""")
    stampn = [0]
    o.stamp_names = []
    def stamp(name="", lvl=1):
        if (o.stamps >= lvl and not o.sel) or (name in o.sel and name not in o.stamp_names):
            n = stampn[0]; stampn[0] += 1
            assert n < 13
            o.stamp_names.append(name)
            g(f"{'s_memrealtime' if o.rt else 's_memtime'} s[{sSt+2*n}:{sSt+2*n+1}]")
    X = M(0); SX1 = M(4); PX = M(5); PM = M(6); O0 = M(7); O1 = M(8); LL = M(9); ONES = M(10); VV = M(11)
    vW2 = PM + 2; RC = PM + 3
    KE = M(13)
    WOL = {(2,0): M(12), (3,0): M(14), (2,1): KX, (3,1): KX+8, (2,2): KX+16, (3,2): KX+24, (2,3): M(0), (3,3): M(2)}
    RA = (M(1), M(3)); RB = (M(5), M(6)); SEL = M(9); DD = M(10); CK = M(8); SN = ONES
    def idle_work():
        L = []
        for f in range(8): L.append(f"ds_read_b128 {vr(KX+4*f,4)}, v{vWo} offset:{lds_w('q',0,f>>1,f&1)}")
        for k in range(0, 12, 2): L.append(f"v_mov_b64 {vr(AQ+k,2)}, 0")
        return L
    def addr_work():
        L = []
        for r, s_ in ((1, sO1), (2, sO2), (3, sO3)):
            L.append(f"v_lshl_add_u32 v{MA[r]}, s{s_}, 2, v{vMrd}")
        L.append(f"v_mov_b32 v{MA[3]+3}, -1")
        return L
    MA = {1: M(7), 2: M(15)+2, 3: M(15)}
    for x in idle_work() + addr_work(): g(x)
    def pf_addr():
        return [f"v_lshlrev_b32 v{MA[3]+1}, 3, v{vKrd}", f"v_and_b32 v{MA[3]+1}, 0x7ff, v{MA[3]+1}",
                f"s_sub_u32 s{sT0}, s{sFlB}, s{sVn}", "s_mov_b64 exec, 0xf0000",
                f"v_lshrrev_b32 v{MA[3]+1}, 5, v{MA[3]+1}", f"v_add_u32 v{MA[3]+1}, s{sT0}, v{MA[3]+1}", "s_mov_b64 exec, -1",
                f"v_writelane_b32 v{vJ}, s{sStep}, 20"]
    def step_scalars():
        return [x.strip() for x in (f"""s_xor_b32 s{sPh}, s{sStep}, s{sH}
        s_and_b32 s{sPh}, s{sPh}, 1
        s_mov_b32 s{sPw}, s{sPoff}
        s_lshl_b32 s{sT3}, s{sH}, 13
        s_add_u32 s{sT0}, s{sStep}, 3
        s_and_b32 s{sT0}, s{sT0}, 3
        s_lshl_b32 s{sMz}, s{sT0}, 13
        s_add_u32 s{sMz}, s{sMz}, s{sMoff}
        s_add_u32 s{sEx}, s{sKV}, {WS_EX}
        s_add_u32 s{sVc}, s{sKV}, {WS_VX}
        s_add_u32 s{sT1}, s{sStep}, 1
        s_min_u32 s{sT1}, s{sT1}, {0 if o.nofar else 63}
        s_lshl_b32 s{sT1}, s{sT1}, 18
        s_add_u32 s{sKV}, s{sT1}, s{sT3}
        s_add_u32 s{sKn}, s{sKV}, {WS_KX}
        s_lshl_b32 s{sT2}, s{sW}, 11
        s_add_u32 s{sVn}, s{sKV}, s{sT2}
        s_add_u32 s{sVn}, s{sVn}, {WS_VX}
        s_xor_b32 s{sM0k}, s{sM0k}, 8192
        s_mov_b32 m0, s{sM0k}
        s_cmp_eq_u32 s{sStep}, {o.nsteps-1}
        s_cselect_b32 s{sRange}, 0, {0 if o.force_slow else 48 << 23}""").split("\n")]
    for x in step_scalars() + pf_addr(): g(x)
    g("s_waitcnt vmcnt(0) lgkmcnt(0)")
    g("s_barrier")
    def smf(acc, A, B): g(f"v_smfmac_f32_16x16x64_bf16 {vr(acc,4)}, {A}, {B}, v{vIdx}")
    def mf(D, A, B, C, op="v_mfma_f32_16x16x32_bf16"): g(f"{op} {vr(D,4)}, {A}, {B}, {C}")
    m16 = "v_mfma_f32_16x16x16_bf16"
    def wb(mat, t):
        r, f = t >> 2, t & 3
        if (mat, r) in slot: return vr(KX + 8*f, 8)
        return wfrag(mat, r, f)
    ACC = {"q": AQ, "k": AK, "v": AV}
    def gm(mat, t, *fill):
        smf(ACC[mat], vr(M(t),4), wb(mat, t))
        stamp(f"{mat}{t}", 9)
        for x in fill: g(x)
    def dpp(dst, src): return f"v_mov_b32_dpp v{dst}, v{src} row_ror:8 row_mask:0xf bank_mask:0xf"
    def mrd(t): return f"ds_read_b128 {vr(M(t),4)}, v{MA[t>>2]} offset:{L_MB+512*(t&3)}"
    def wkr(n): return f"ds_read_b128 {vr(KX+4*n,4)}, v{vWo} offset:{lds_w('k',3,n>>1,n&1)}"
    def kxr(n): return f"ds_read_b128 {vr(KX+4*n,4)}, v{vKrd} offset:{L_KB+1024*n}"
    def xr(b, x, dst=None, ad=None): return f"ds_read_b64_tr_b16 {vr((X+4*b if dst is None else dst)+2*x,2)}, v{vXrd if ad is None else ad} offset:{L_XB+(32*b+16*x)*8}"
    def wor(r, n): return f"ds_read_b128 {vr(WOL[(r, n>>1)]+4*(n&1),4)}, v{vW2} offset:{lds_w('o',r,n>>1,n&1)-65536}"
    def cvt(d, a_, b_): return f"v_cvt_pk_bf16_f32 v{d}, v{a_}, v{b_}"
    PB = (M(12), M(14))
    def issue2(regs, so):
        g(f"buffer_load_dwordx4 {vr(regs[0],4)}, v{vQ}, {W}, s{so} offen sc1")
        g(f"buffer_load_dwordx4 {vr(regs[1],4)}, v{vQ}, {W}, s{so} offen offset:1024 sc1")
    def check2(regs, mm=False):
        r0, r1 = regs
        g("s_waitcnt vmcnt(3)")
        if mm:
            mf(DD, vr(SEL,4), vr(r0,4), 0)
            g(f"v_bitop3_b32 v{CK}, v{r0}, v{r0+2}, v{CK+2} bitop3:0x7e")
            g("s_waitcnt vmcnt(2)")
            mf(DD, vr(SEL,4), vr(r1,4), vr(DD,4))
            g(f"v_bitop3_b32 v{CK+1}, v{r1}, v{r1+2}, v{CK+2} bitop3:0x7e")
            g(f"v_bitop3_b32 v{CK}, v{CK}, v{CK+1}, 1 bitop3:0xa8")
            g(f"v_cmp_ne_u32 vcc, 0, v{CK}")
            return
        g(f"v_max3_u32 v{CK}, v{r0}, v{r0+1}, v{r0+2}")
        g(f"v_max_u32 v{CK}, v{CK}, v{r0+3}")
        g("s_waitcnt vmcnt(2) lgkmcnt(0)")
        g(f"v_max3_u32 v{CK}, v{CK}, v{r1}, v{r1+1}")
        g(f"v_max3_u32 v{CK}, v{CK}, v{r1+2}, v{r1+3}")
        g(f"v_cmp_eq_u32 vcc, -1, v{CK}")
    g("s_branch R_loop")
    g(".p2align 4")
    g("R_top:")
    g("s_barrier")
    if o.stamps and "B0" in o.sel: g(f"s_memtime s[{sSt+24}:{sSt+25}]")
    sc = step_scalars()
    for x in sc[:o.pdelay]: g(x)
    issue2((M(0), M(2)), sMr)
    for x in sc[o.pdelay:]: g(x)
    issue2(PB, sMr)
    for x in pf_addr(): g(x)
    g("R_poll:")
    check2((M(0), M(2)))
    g("s_cbranch_vccnz R_pollB")
    g("R_pollok:")
    if o.stamps:
        g(f"{'s_memrealtime' if o.rt else 's_memtime'} s[{sSt+26}:{sSt+27}]")
        g(f"""s_waitcnt lgkmcnt(0)
        s_lshl_b32 s{sT0}, s{sH}, 2
        s_add_u32 s{sT0}, s{sT0}, s{sW}
        s_lshl_b32 s{sT0}, s{sT0}, 6
        s_add_u32 s{sT0}, s{sT0}, s{sStep}
        s_lshl_b32 s{sT0}, s{sT0}, 6
        s_add_u32 s{sT0}, s{sT0}, {WS_DBG + 1024*1024}""")
        for n in range(14): g(f"v_writelane_b32 v{DD}, s{sSt+2*n}, {n}")
        g(f"v_writelane_b32 v{DD}, s{sFailA}, 14")
        g(f"v_writelane_b32 v{DD}, s{sBudget}, 15")
        g(f"v_lshrrev_b32 v{DD+1}, 2, v{vKrd}")
        g(f"v_and_b32 v{DD+1}, 0xff, v{DD+1}")
        g("s_mov_b64 exec, 0xffff")
        g(f"buffer_store_dword v{DD}, v{DD+1}, {W}, s{sT0} offen")
        g("s_mov_b64 exec, -1")
    g("R_loop:")
    stamp("start")
    far = [f"buffer_load_dwordx4 v{vQ}, {W}, s{sKn} offen sc1 lds", f"buffer_load_dwordx4 v{vQ}, {W}, s{sKn} offen offset:1024 sc1 lds",
           f"buffer_load_dword v{vJ}, v{MA[3]+1}, {W}, s{sVn} offen sc1"]
    exs = "" if o.noexp else " sc1"
    gm("q", 0, f"ds_write_b128 v{vQ}, {vr(M(0),4)} offset:{L_MB}")
    gm("k", 0, f"ds_write_b128 v{vQ}, {vr(M(2),4)} offset:{L_MB+1024}")
    gm("q", 2, f"buffer_load_dwordx4 {vr(V,4)}, v{vQ}, {W}, s{sVc} offen sc1", dpp(M(1), M(0)))
    gm("k", 2, dpp(M(1)+1, M(0)+1), dpp(M(1)+2, M(0)+2))
    gm("v", 0, f"buffer_load_dwordx4 {vr(V+4,4)}, v{vQ}, {W}, s{sVc} offen offset:1024 sc1", dpp(M(1)+3, M(0)+3))
    gm("v", 2, dpp(M(3), M(2)), dpp(M(3)+1, M(2)+1))
    gm("q", 1, "s_waitcnt lgkmcnt(0)", "s_barrier")
    stamp("B1", 2)
    g(mrd(4))
    gm("k", 1, mrd(5), dpp(M(3)+2, M(2)+2), dpp(M(3)+3, M(2)+3))
    gm("v", 1, "s_mov_b64 exec, 0xfffff", far[2], "s_mov_b64 exec, -1")
    gm("q", 3, mrd(6), mrd(7))
    gm("k", 3, mrd(8), far[0])
    gm("v", 3, mrd(9), "s_waitcnt lgkmcnt(5)")
    seq = []
    for m_ in range(4): seq += [("q", 4+3*m_), ("q", 5+3*m_), ("q", 6+3*m_), ("k", 4+m_)]
    seq += [("k", t) for t in range(8, 16)]
    ds = [mrd(t) for t in range(10, 16)] + [wkr(n) for n in range(8)]
    issued = 6
    extra = {
      1: ["s_waitcnt vmcnt(4)"], 2: [far[1]], 4: [f"buffer_store_dword v{MA[3]+3}, v{vMst}, {W}, s{sMz} offen"],
      14: ["s_mov_b64 exec, 0x100000", f"buffer_store_dword v{vJ}, off, {W}, s{sFlE} sc1", "s_mov_b64 exec, -1"],
      16: [f"v_mul_f32 v{AQ}, s{sC}, v{AQ}"], 17: [f"v_mul_f32 v{AQ+1}, s{sC}, v{AQ+1}"],
      18: [f"v_mul_f32 v{AQ+2}, s{sC}, v{AQ+2}"], 19: ["s_waitcnt lgkmcnt(0)", f"v_mul_f32 v{AQ+3}, s{sC}, v{AQ+3}"],
      20: [cvt(AQ, AQ, AQ+1)], 21: [kxr(0), cvt(AQ+1, AQ+2, AQ+3)],
      22: [f"ds_write_b64 v{vXwr}, {vr(AQ,2)} offset:{L_XB}"], 23: [kxr(1), f"v_mov_b32 v{AQ}, v{vMask}"],
    }
    for n, (mat, t) in enumerate(seq):
        fill = []
        nxt = seq[n+1] if n+1 < len(seq) else None
        if nxt and nxt[0] == "q":
            wv = " vmcnt(4)" if n == 1 else ""
            fill.append(f"s_waitcnt lgkmcnt({issued - (nxt[1] - 3)}){wv}")
        if n < len(ds): fill.append(ds[n]); issued += 1
        fill += [x for x in extra.get(n, []) if n != 1]
        gm(mat, t, *fill)
    stamp("kdone", 2)
    E = PX
    gm("v", 5, f"v_mov_b32 v{AQ+1}, v{vMask}", f"v_mov_b64 {vr(AQ+2,2)}, {vr(AQ,2)}", cvt(E, AK, AK+1), cvt(E+1, AK+2, AK+3))
    gm("v", 4, f"ds_write_b64 v{vXwr}, {vr(E,2)} offset:{L_XB+2*XPL}")
    gm("v", 6, f"v_add_u32 v{vW2}, 0x10000, v{vWo}")
    gm("v", 10, kxr(2), f"v_mov_b32 v{ONES}, 0x3f803f80")
    gm("v", 11, kxr(3), f"v_mov_b32 v{ONES+1}, 0x3f803f80")
    gm("v", 12, f"buffer_store_dwordx2 {vr(E,2)}, v{vXwr}, {W}, s{sEx} offen{exs}")
    gm("v", 13, "s_waitcnt lgkmcnt(2)", "s_barrier")
    stamp("B2")
    g(xr(0,0)); g(xr(0,1))
    gm("v", 14, xr(1,0), xr(1,1))
    gm("v", 15, xr(2,0), xr(2,1))
    gm("v", 7, xr(3,0), xr(3,1))
    gm("v", 8, kxr(4), f"v_mov_b64 {vr(ONES+2,2)}, {vr(ONES,2)}")
    gm("v", 9, kxr(5), "s_waitcnt lgkmcnt(6)")
    xb = lambda b: vr(X+4*b, 4)
    SM, SX0 = AQ, AK
    def ex(r): return f"v_exp_f32 v{r}, v{r}"
    sfill = {
      0: [kxr(6), f"v_mov_b64 {vr(VV,2)}, 0"],
      1: ["s_waitcnt lgkmcnt(3)", kxr(7), cvt(VV+2, AV, AV+1)],
      2: [wor(2, 0), cvt(VV+3, AV+2, AV+3)],
      3: [wor(2, 1), f"v_xor_b32 v{vKrd}, 8192, v{vKrd}"],
      4: [f"buffer_store_dwordx2 {vr(VV+2,2)}, v{vXwr}, {W}, s{sEx} offen offset:{2*XPL}{exs}"],
      5: [ex(SM)], 6: [ex(SM+1)], 7: ["s_waitcnt lgkmcnt(2)", ex(SM+2)], 8: [ex(SM+3)],
      9: [ex(SX0)], 10: [ex(SX0+1)], 11: [ex(SX0+2), ex(SX0+3)],
    }
    n = 0
    for D, A_, C0 in ((SM, xb, None), (SX0, lambda b: vr(KX+4*b,4), "0"), (SX1, lambda b: vr(KX+16+4*b,4), "0")):
        for b in range(4):
            mf(D, A_(b), xb(b), C0 if (b == 0 and C0) else vr(D,4))
            stamp(f"S{n}", 9)
            for x in sfill.get(n, []): g(x)
            n += 1
    stamp("Sissued", 3)
    g(cvt(PM, SM, SM+1)); g(cvt(PM+1, SM+2, SM+3))
    g(f"v_permlane32_swap_b32 v{VV}, v{VV+2}")
    g(f"v_permlane32_swap_b32 v{VV+1}, v{VV+3}")
    mf(LL, vr(ONES,2), vr(PM,2), 0, m16); g(ex(SX1))
    mf(O0, vr(VV,2), vr(PM,2), 0, m16); g(ex(SX1+1))
    mf(O1, vr(VV+2,2), vr(PM,2), 0, m16); g(ex(SX1+2))
    g(ex(SX1+3))
    g(cvt(PX, SX0, SX0+1)); g(cvt(PX+1, SX0+2, SX0+3)); g(cvt(PX+2, SX1, SX1+1)); g(cvt(PX+3, SX1+2, SX1+3))
    g(f"s_waitcnt vmcnt(7)")
    g(f"v_mov_b64 {vr(AQ,2)}, 0")
    mf(LL, vr(ONES,4), vr(PX,4), vr(LL,4)); g(wor(3, 0)); g(wor(3, 1))
    mf(O0, vr(V,4), vr(PX,4), vr(O0,4)); g(wor(2, 2)); g(wor(2, 3))
    mf(O1, vr(V+4,4), vr(PX,4), vr(O1,4))
    stamp("PV", 3)
    g(f"v_rcp_f32 v{RC}, v{LL}")
    g(f"v_mov_b64 {vr(AQ+2,2)}, 0")
    g(f"v_mul_f32 v{O0}, v{RC}, v{O0}")
    g(f"v_mov_b32_dpp v{RC}, v{RC} row_ror:8 row_mask:0xf bank_mask:0xc")
    for k in range(1, 4): g(f"v_mul_f32 v{O0+k}, v{RC}, v{O0+k}")
    for k in range(4): g(f"v_mul_f32_dpp v{O0+k}, v{O1+k}, v{RC} row_ror:8 row_mask:0xf bank_mask:0xc")
    g(cvt(O0, O0, O0+1)); g(cvt(O0+1, O0+2, O0+3))
    g(f"ds_write_b64 v{vOwr}, {vr(O0,2)} offset:{L_OB}")
    stamp("owr")
    OA = [AQ, AK, SX1, AV]
    OF = [O0, O1, LL, PX]
    g(f"v_subrev_u32 v{RC}, {(127-24) << 23}, v{RC}")
    g(f"v_cmp_le_u32 vcc, s{sRange}, v{RC}")
    def post_owr():
        g(dpp(O0+2, O0)); g(dpp(O0+3, O0+1))
        g(f"v_add_u32 v{OF[1]}, s{sO1}, v{vMrd}")
        g(f"v_add_u32 v{OF[2]}, s{sO2}, v{vMrd}")
        g(f"v_add_u32 v{OF[3]}, s{sO3}, v{vMrd}")
        g(f"v_mov_b64 {vr(AK,2)}, 0"); g(f"v_mov_b64 {vr(AK+2,2)}, 0")
        g(f"v_mov_b64 {vr(SX1,2)}, 0"); g(f"v_mov_b64 {vr(SX1+2,2)}, 0"); g(f"v_mov_b64 {vr(AV,2)}, 0"); g(f"v_mov_b64 {vr(AV+2,2)}, 0")
    post_owr()
    g("s_cbranch_vccnz R_slow")
    g("R_slowret:")
    smf(OA[0], vr(O0,4), wfrag("o",0,0))
    g("s_waitcnt lgkmcnt(0)")
    g("s_barrier")
    stamp("B3", 2)
    for r in range(1, 4): g(f"ds_read_b128 {vr(OF[r],4)}, v{OF[r]} offset:{L_OB}")
    smf(OA[1], vr(O0,4), wfrag("o",0,1))
    smf(OA[2], vr(O0,4), wfrag("o",0,2)); g(wor(3, 2))
    smf(OA[3], vr(O0,4), wfrag("o",0,3)); g(wor(3, 3)); g("s_waitcnt lgkmcnt(4)")
    def wo(r, u): return wfrag("o",1,u) if r == 1 else vr(WOL[(r, u)], 8)
    def wm(r, u, *fill):
        smf(OA[u], vr(OF[r],4), wo(r, u))
        stamp(f"w{r}{u}", 9)
        for x in fill: g(x)
    ustep = 2048 if o.uspread else 2*o.rs
    def pst(u): return f"buffer_store_dwordx2 {vr(OA[u],2)}, v{vPst}, {W}, s{sPw} offen"
    def pcv(u): return [cvt(OA[u], OA[u], OA[u]+1), cvt(OA[u]+1, OA[u]+2, OA[u]+3), f"v_and_or_b32 v{OA[u]}, v{OA[u]}, -2, s{sPh}"]
    inc = f"s_add_u32 s{sPw}, s{sPw}, {ustep}"
    wm(1, 0, wor(2, 4), "s_waitcnt lgkmcnt(4)")
    wm(2, 0, wor(2, 5), "s_waitcnt lgkmcnt(4)")
    wm(3, 0, wor(3, 4), wor(3, 5))
    wm(1, 1, wor(2, 6), wor(2, 7), "s_waitcnt lgkmcnt(6)", *pcv(0))
    wm(2, 1, pst(0))
    wm(3, 1, inc, wor(3, 6), wor(3, 7))
    wm(1, 2, "s_waitcnt lgkmcnt(4)")
    wm(2, 2, *pcv(1))
    wm(3, 2, pst(1))
    wm(1, 3, "s_waitcnt lgkmcnt(0)", inc)
    wm(2, 3, *pcv(2))
    wm(3, 3, pst(2), inc, f"s_add_u32 s{sStep}, s{sStep}, 1", f"s_and_b32 s{sT0}, s{sStep}, 3", f"s_lshl_b32 s{sT0}, s{sT0}, 13")
    g(f"s_add_u32 s{sMr}, s{sT0}, {WS_M}")
    g(f"s_add_u32 s{sMw}, s{sT0}, s{sMoff}")
    for x in pcv(3): g(x)
    g(pst(3))
    def kexp():
        return [f"s_lshl_b32 s{sT0}, s{sW}, 8", f"v_add_u32 v{KE+2}, s{sT0}, v{vXrd}", xr(0, 0, KE, KE+2), xr(0, 1, KE, KE+2)]
    stamp("pst")
    iw = idle_work()
    pre = [f"v_mov_b32 v{DD}, 0x3f80", f"v_cndmask_b32 v{DD}, v{DD}, 1.0, s[{sMaskOdd}:{sMaskOdd+1}]"]
    pre += [f"v_cndmask_b32 v{SEL+d}, 0, v{DD}, s[{sMaskD+2*d}:{sMaskD+2*d+1}]" for d in range(4)]
    pre += [f"v_lshrrev_b32 v{CK+2}, 6, v{vKrd}", f"v_xnor_b32 v{CK+2}, s{sStep}, v{CK+2}"]
    pre += iw[8:] + addr_work() + iw[:8]
    for x in pre[:o.rdelay]: g(x)
    if o.rwait >= 0: g(f"s_waitcnt vmcnt({o.rwait})")
    stamp("rgo")
    issue2(RA, sRoff)
    for x in pre[o.rdelay:]: g(x)
    if o.rgap: g(f"s_nop {o.rgap-1}")
    issue2(RB, sRoff)
    g(f"""s_add_u32 s{sReq}, s{sStep}, 3
    s_lshr_b32 s{sReq}, s{sReq}, 1
    s_min_u32 s{sReq}, s{sReq}, 32
    s_waitcnt vmcnt(8)
    v_cmp_gt_u32 vcc, s{sReq}, v{vJ}
    s_and_b32 s{sT0}, vcc_lo, 0xf0000
    s_cbranch_scc1 R_kvwait""")
    g("R_red:")
    check2(RA, True)
    g("s_cbranch_vccnz R_redB")
    g("R_redok:")
    stamp("rok", 9)
    for sh in (8, 4):
        for k in range(2): g(f"v_add_f32_dpp v{DD+k}, v{DD+k}, v{DD+k} row_ror:{sh} row_mask:0xf bank_mask:0xf")
    g(cvt(DD, DD, DD+1))
    g(f"buffer_store_dword v{DD}, v{vMst}, {W}, s{sMw} offen")
    stamp("pub")
    g("s_branch R_top")
    g("R_redB:")
    issue2(RA, sRoff)
    g(f"s_add_u32 s{sFailA}, s{sFailA}, 1")
    check2(RB, True)
    g("s_cbranch_vccz R_redok")
    issue2(RB, sRoff)
    g(f"s_add_u32 s{sFailA}, s{sFailA}, 1")
    g(f"s_cmp_lt_u32 s{sFailA}, 0x40000")
    g("s_cbranch_scc1 R_red")
    g("s_endpgm")
    g("R_kvwait:")
    g(f"v_bfe_u32 v{CK}, v{vKrd}, 4, 2\nv_lshlrev_b32 v{CK}, 2, v{CK}\nv_mov_b32 v{CK+1}, s{sReq}")
    roles.spin(g, "R_kv", CK, f"s{sFlB}", CK+1, CK+3)
    g("s_branch R_red")
    g("R_pollB:")
    issue2((M(0), M(2)), sMr)
    g(f"s_sub_u32 s{sBudget}, s{sBudget}, 1")
    check2(PB)
    g("s_cbranch_vccnz R_pollfail")
    for k in (0, 2): g(f"v_mov_b64 {vr(M(0)+k,2)}, {vr(PB[0]+k,2)}")
    for k in (0, 2): g(f"v_mov_b64 {vr(M(2)+k,2)}, {vr(PB[1]+k,2)}")
    g(f"s_branch R_pollok")
    g("R_pollfail:")
    issue2(PB, sMr)
    g(f"s_sub_u32 s{sBudget}, s{sBudget}, 1")
    g(f"s_cmp_gt_i32 s{sBudget}, 0")
    g("s_cbranch_scc1 R_poll")
    g("s_endpgm")
    if o.stamps:
        while len(o.stamp_names) < 13: o.stamp_names.append("-")
        if "B0" in o.sel: o.stamp_names[12] = "B0"
        o.stamp_names.append("Mok")
    g("R_slow:")
    g(f"s_cmp_eq_u32 s{sStep}, {o.nsteps-1}")
    g("s_cbranch_scc1 R_done")
    g("s_waitcnt lgkmcnt(0)")
    g(f"v_xor_b32 v{vKrd}, 8192, v{vKrd}")
    for n in range(8): g(kxr(n))
    g(f"v_xor_b32 v{vKrd}, 8192, v{vKrd}")
    g("s_waitcnt lgkmcnt(0)")
    for b in range(4): g(xr(b, 0)); g(xr(b, 1))
    for k in range(4): g(f"v_mov_b32 v{SM+k}, v{vMask}")
    g("s_waitcnt lgkmcnt(0)")
    for D, A_, C0 in ((SX0, lambda b: vr(KX+4*b,4), "0"), (SX1, lambda b: vr(KX+16+4*b,4), "0"), (SM, xb, None)):
        for b in range(4): mf(D, A_(b), xb(b), C0 if (b == 0 and C0) else vr(D,4))
    g(wor(2, 2)); g(wor(2, 3))
    sregs = [SX0+j for j in range(4)] + [SX1+j for j in range(4)] + [SM+j for j in range(4)]
    mx, mt = O0, O0+1
    g(f"v_max3_f32 v{mx}, v{sregs[0]}, v{sregs[1]}, v{sregs[2]}")
    for k in range(3, 11, 2): g(f"v_max3_f32 v{mx}, v{mx}, v{sregs[k]}, v{sregs[k+1]}")
    g(f"v_max_f32 v{mx}, v{mx}, v{sregs[11]}")
    for sw in ("v_permlane32_swap_b32", "v_permlane16_swap_b32"):
        g(f"v_mov_b32 v{mt}, v{mx}")
        g(f"{sw} v{mx}, v{mt}")
        g(f"v_max_f32 v{mx}, v{mx}, v{mt}")
    for s_ in sregs: g(f"v_sub_f32 v{s_}, v{s_}, v{mx}")
    for s_ in sregs: g(ex(s_))
    for k in range(4): g(cvt(PX+k, sregs[2*k], sregs[2*k+1]))
    for k in range(2): g(cvt(PM+k, sregs[8+2*k], sregs[9+2*k]))
    mf(LL, vr(ONES,4), vr(PX,4), 0); mf(O0, vr(V,4), vr(PX,4), 0); mf(O1, vr(V+4,4), vr(PX,4), 0)
    mf(LL, vr(ONES,2), vr(PM,2), vr(LL,4), m16); mf(O0, vr(VV,2), vr(PM,2), vr(O0,4), m16); mf(O1, vr(VV+2,2), vr(PM,2), vr(O1,4), m16)
    g(f"v_rcp_f32 v{RC}, v{LL}")
    g(f"v_mov_b32_dpp v{RC}, v{RC} row_ror:8 row_mask:0xf bank_mask:0xc")
    for k in range(4): g(f"v_mul_f32 v{O0+k}, v{RC}, v{O0+k}")
    for k in range(4): g(f"v_mul_f32_dpp v{O0+k}, v{O1+k}, v{RC} row_ror:8 row_mask:0xf bank_mask:0xc")
    g(cvt(O0, O0, O0+1)); g(cvt(O0+1, O0+2, O0+3))
    g(f"ds_write_b64 v{vOwr}, {vr(O0,2)} offset:{L_OB}")
    post_owr()
    for k in range(0, 4, 2): g(f"v_mov_b64 {vr(AQ+k,2)}, 0")
    g("s_waitcnt lgkmcnt(0)")
    g("s_branch R_slowret")
    g("R_done:")
    g("s_waitcnt vmcnt(0) lgkmcnt(0)")
    roles.set_flag(g, sFlE, o.nsteps, vJ)

def gen(o):
    g = G()
    R = roles
    g(f"s_cmp_ge_u32 s2, 256")
    g("s_cbranch_scc0 K_go")
    g("s_endpgm")
    g("K_go:")
    if o.prof or o.ronly:
        g("s_memrealtime s[96:97]")
        g("s_memtime s[100:101]")
    srd(g, S_WS, 96, WS_SIZE); srd(g, S_DBG, 88, 256)
    g(f"""v_lshrrev_b32 v1, 6, v0
    s_mov_b32 s{sBudget}, 0x40000
    v_readfirstlane_b32 s{sW}, v1
    s_getreg_b32 s3, hwreg(HW_REG_XCC_ID)
    s_and_b32 s3, s3, 7
    s_mul_i32 s20, s3, 24
    s_add_u32 s20, s20, 56
    s_cmp_eq_u32 s3, 0
    s_cselect_b32 s20, 0, s20
    v_mov_b32 v2, 1
    v_mov_b32 v3, 0
    s_cmp_eq_u32 s{sW}, 0
    s_waitcnt lgkmcnt(0)
    s_cbranch_scc0 K_tick
    s_mov_b64 exec, 1
    buffer_atomic_add v2, off, s[{S_DBG}:{S_DBG+3}], s20 sc0
    s_waitcnt vmcnt(0)
    ds_write_b32 v3, v2
    s_waitcnt lgkmcnt(0)
    s_mov_b64 exec, -1
    K_tick:
    s_barrier
    ds_read_b32 v2, v3
    s_waitcnt lgkmcnt(0)
    v_readfirstlane_b32 s{sH}, v2
    s_cmp_lt_u32 s{sH}, 32
    s_cbranch_scc1 K_role
    s_endpgm
    K_role:""")
    if o.prof:
        g(f"""s_lshl_b32 s20, s3, 5
        s_add_u32 s20, s20, s{sH}
        s_lshl_b32 s20, s20, 5
        v_mov_b32 v254, s96
        s_add_u32 s97, s20, {WS_DBG}
        s_mov_b64 exec, 1
        buffer_store_dword v254, off, {W}, s97
        s_mov_b64 exec, -1""")
    g(f"""s_cmp_eq_u32 s3, 0
    s_cbranch_scc1 R_entry""")
    if o.ronly:
        g("s_endpgm")
    else:
        g(f"""s_sub_u32 s3, s3, 1
        s_lshl_b32 s3, s3, 5
        s_add_u32 s{R.sK}, s3, s{sH}
        v_and_b32 v{R.vL}, 63, v0""")
        R.gemm_setup(g, o, 80)
        R.gen_gemm(g, o)
        g(f"""s_cmp_eq_u32 s{R.sPhase}, 3
        s_cbranch_scc0 W_next
        s_endpgm
        W_next:
        s_cmp_ge_u32 s{R.sK}, 192
        s_cbranch_scc1 FA_entry""")
        R.gen_att(g, o)
        g(f"s_cmp_ge_u32 s{R.sK}, 128\ns_cbranch_scc1 W_a3")
        R.gen_fg(g, o)
        R.gen_fa(g, o)
    gen_R(g, o)
    R.tstamp(g, o, 6)
    if o.ronly:
        g(f"""s_memrealtime s[98:99]
        s_memtime s[94:95]
        s_waitcnt lgkmcnt(0)
        s_sub_u32 s98, s98, s96
        s_sub_u32 s94, s94, s100
        v_mov_b32 v3, s94
        v_mov_b32 v1, s98
        v_mov_b32 v2, 0
        s_lshl_b32 s20, s{sH}, 2
        s_add_u32 s20, s20, {WS_DBG + 1000*1024}
        buffer_store_dword v1, v2, s[{S_WS}:{S_WS+3}], s20 offen
        buffer_store_dword v3, v2, s[{S_WS}:{S_WS+3}], s20 offen offset:128
        s_waitcnt vmcnt(0)""")
    g("s_endpgm")
    body = g.text()
    if o.stamps: body = ("; RT\n" if o.rt else "") + "; STAMPS " + " ".join(o.stamp_names) + "\n" + body
    head = open("cdna_kernels/" + NAME + ".s.ref").read().split("; Override")[0]
    return (head + f"; @launch grid=(256,1,1) block=(256,1,1) lds={LDS_BYTES}\n"
      f'.amdgcn_target "amdgcn-amd-amdhsa--gfx950"\n.text\n.globl {NAME}_kernel\n.p2align 8\n.type {NAME}_kernel,@function\n{NAME}_kernel:\n'
      + body +
      f'.section .rodata,"a"\n.p2align 6\n.amdhsa_kernel {NAME}_kernel\n  .amdhsa_next_free_vgpr 512\n  .amdhsa_next_free_sgpr 102\n  .amdhsa_accum_offset 256\n'
      '  .amdhsa_group_segment_fixed_size 0\n  .amdhsa_kernarg_size 104\n  .amdhsa_user_sgpr_count 2\n  .amdhsa_user_sgpr_kernarg_segment_ptr 1\n'
      '  .amdhsa_system_sgpr_workgroup_id_x 1\n  .amdhsa_float_denorm_mode_32 3\n.end_amdhsa_kernel\n')

if __name__ == "__main__":
    o = Opt()
    out = sys.argv[1]
    for a in sys.argv[2:]:
        k, v = a.split("=")
        setattr(o, k, v.split(',') if k == 'sel' else int(v))
    open(out, "w").write(gen(o))
```

```python
from asmgen import *
from cfg import *
sK = 3
sT0, sT1, sT2, sT3 = 20, 21, 22, 23
vL = 255
MF16 = "v_mfma_f32_16x16x32_bf16"
MF32 = "v_mfma_f32_32x32x16_bf16"
def cvt(d, a, b): return f"v_cvt_pk_bf16_f32 v{d}, v{a}, v{b}"

def tstamp(g, o, n, vt=254):
    if not o.prof: return
    if o.prof == 2:
        g(f"""s_memrealtime s[98:99]
        s_waitcnt lgkmcnt(0)
        v_mov_b32 v{vt}, s98
        s_cmp_lt_u32 s97, 64
        s_cselect_b64 exec, 1, 0
        buffer_store_dword v{vt}, off, s[{S_DBG}:{S_DBG+3}], s97 offset:{4*n} sc1
        s_mov_b64 exec, -1""")
        return
    g(f"""s_memrealtime s[98:99]
    s_waitcnt lgkmcnt(0)
    v_mov_b32 v{vt}, s98
    s_mov_b64 exec, 1
    buffer_store_dword v{vt}, off, {W}, s97 offset:{4*n}
    s_mov_b64 exec, -1""")

def spin(g, name, vaddr, soff, vreq, vtmp, srd_=W, one=False, sleep=2):
    if one: g(f"s_cmp_eq_u32 s{sW}, 0\ns_cbranch_scc0 {name}_ok")
    g(f"""{name}:
    buffer_load_dword v{vtmp}, v{vaddr}, {srd_}, {soff} offen sc1
    s_waitcnt vmcnt(0)
    v_cmp_gt_u32 vcc, v{vreq}, v{vtmp}
    s_cbranch_vccz {name}_ok
    s_sleep {sleep}
    s_sub_u32 s{sBudget}, s{sBudget}, 1
    s_cbranch_scc0 {name}
    s_endpgm
    {name}_ok:""")

def wait_init(g, name, t0, one=False):
    g(f"v_mov_b32 v{t0}, 4\nv_mov_b32 v{t0+1}, 32")
    spin(g, name, t0, 0, t0+1, t0+2, f"s[{S_DBG}:{S_DBG+3}]", one=one, sleep=8)

def set_flag(g, sflag, val, vt, one=False):
    if one: g(f"s_cmp_eq_u32 s{sW}, 0")
    g(f"""v_mov_b32 v{vt}, {val}
    {"s_cselect_b64 exec, 1, 0" if one else "s_mov_b64 exec, 1"}
    buffer_store_dword v{vt}, off, {W}, s{sflag} sc1
    s_mov_b64 exec, -1""")

S_WT, S_X, S_D = 24, 28, 32
sWoff, sWstr, sXoff, sXstep, sD0, sDdel, sDstep, sScale, sNseg, sFlag, sForm, sPerm, sPhase, sN, sBuf, sD1 = range(36, 52)
sExE = 52
sExF = 54
def gen_gemm(g, o):
    ACC = [0, 16]; XF = 32; NXF = 8; vXs = 64; vXr0 = 72; vXr = 76; vSt = 80; t0, t1, t2 = 81, 82, 83
    i, gg, a, c = 84, 85, 86, 87; vF = 88
    X, WT, D = [f"s[{b}:{b+3}]" for b in (S_X, S_WT, S_D)]
    g("G_entry:")
    g(f"""v_and_b32 v{i}, 15, v{vL}
    v_lshrrev_b32 v{gg}, 4, v{vL}
    v_lshrrev_b32 v{a}, 2, v{i}
    v_and_b32 v{c}, 3, v{vL}""")
    g(f"""s_lshr_b32 s{sT0}, s{sW}, 1
    s_lshl_b32 s{sT0}, s{sT0}, 3
    v_lshlrev_b32 v{t0}, 1, v{gg}
    v_or_b32 v{t0}, s{sT0}, v{t0}
    v_xor_b32 v{t0}, v{t0}, v{i}
    s_lshl_b32 s{sT0}, s{sW}, 2
    v_add_u32 v{t1}, s{sT0}, v{gg}
    v_mul_lo_u32 v{t1}, v{t1}, s{sWstr}
    v_lshl_add_u32 v{t0}, v{t0}, 4, v{t1}
    s_lshl_b32 s{sT1}, s{sW}, 10
    s_add_u32 s{sT1}, s{sT1}, 32768
    s_lshl_b32 s{sT2}, s{sWstr}, 4
    s_mov_b32 s{sT0}, s{sWoff}
    s_waitcnt lgkmcnt(0)
    s_barrier""")
    for m in range(32):
        g(f"""s_mov_b32 m0, s{sT1}
        s_add_u32 s{sT1}, s{sT1}, 4096
        buffer_load_dwordx4 v{t0}, {WT}, s{sT0} offen lds
        s_add_u32 s{sT0}, s{sT0}, s{sT2}""")
    g(f"s_lshl_b32 s{sT0}, s{sW}, 3")
    for m in range(8):
        g(f"""s_add_u32 s{sT1}, s{sT0}, {m}
        s_and_b32 s{sT2}, s{sT1}, 15
        s_lshl_b32 s{sT1}, s{sT1}, 10
        v_xor_b32 v{vXs+m}, s{sT2}, v{vL}
        v_lshlrev_b32 v{vXs+m}, 4, v{vXs+m}
        v_add_u32 v{vXs+m}, s{sT1}, v{vXs+m}""")
    for tl in range(4):
        g(f"""v_add_u32 v{t1}, {4*tl}, v{gg}
        v_xor_b32 v{t1}, v{t1}, v{i}
        v_lshlrev_b32 v{t1}, 4, v{t1}
        v_lshl_add_u32 v{vXr0+tl}, v{i}, 10, v{t1}
        v_mov_b32 v{vXr+tl}, v{vXr0+tl}""")
    g(f"s_cmp_eq_u32 s{sPhase}, 3\ns_cbranch_scc0 G_nowait")
    g(f"v_lshlrev_b32 v{t0}, 2, v{vL}\nv_mov_b32 v{t1}, 1")
    for k in range(3):
        g(f"s_mov_b32 s{sT0}, {FL_A2 + 256*k}")
        spin(g, f"G_wa{k}", t0, f"s{sT0}", t1, t2, one=True, sleep=16)
    g("s_barrier")
    g("G_nowait:")
    def xdma(m0base):
        L = []
        for m in range(8):
            L.append([f"s_add_u32 m0, s{m0base}, {1024*m}", f"buffer_load_dwordx4 v{vXs+m}, {X}, s{sXoff} offen sc1 lds"])
        return L
    g(f"s_lshl_b32 s{sBuf}, s{sW}, 13")
    for p in xdma(sBuf): g(p[0]); g("s_nop 0"); g(p[1])
    g(f"s_add_u32 s{sXoff}, s{sXoff}, s{sXstep}")
    g(f"""s_cmp_eq_u32 s{sPerm}, 0
    s_cselect_b32 s{sT0}, 3, 4
    s_cselect_b32 s{sT1}, 32, 8
    v_lshlrev_b32 v{t0}, s{sT0}, v{c}
    s_lshl_b32 s{sT2}, s{sW}, 6
    v_add_u32 v{t0}, s{sT2}, v{t0}
    v_add_u32 v{t1}, s{sT1}, v{t0}
    v_and_b32 v{t2}, 1, v{gg}
    v_lshl_add_u32 v{t2}, v{t2}, 2, v{a}
    v_lshlrev_b32 v{t2}, 5, v{t2}
    v_xor_b32 v{t0}, v{t0}, v{t2}
    v_xor_b32 v{t1}, v{t1}, v{t2}
    v_lshl_add_u32 v{t2}, v{gg}, 3, v{a}
    v_lshlrev_b32 v{t2}, 8, v{t2}
    v_add_u32 v{t2}, 32768, v{t2}
    v_add_u32 v{t0}, v{t0}, v{t2}
    v_add_u32 v{t1}, v{t1}, v{t2}
    s_waitcnt vmcnt(8)
    s_barrier""")
    for t in range(16):
        if t == 8: g(f"v_add_u32 v{t0}, 0x10000, v{t0}\nv_add_u32 v{t1}, 0x10000, v{t1}")
        for T in range(2):
            for hh in range(2):
                g(f"ds_read_b64_tr_b16 {vr((T*16+t)*4+2*hh, 2, 'a')}, v{(t0,t1)[T]} offset:{((t&7)*32+4*hh)*256}")
        if t % 2 == 1: g("s_waitcnt lgkmcnt(0)")
    g("s_barrier")
    g(f"s_add_u32 s{sBuf}, s{sBuf}, 32768")
    for p in xdma(sBuf): g(p[0]); g("s_nop 0"); g(p[1])
    wait_init(g, "G_init", t0, one=True)
    g("s_waitcnt vmcnt(0)")
    tstamp(g, o, 1)
    g(f"""s_mov_b32 s{sN}, 0
    s_mov_b64 s[{sExE}:{sExE+1}], 0
    s_cmp_eq_u32 s{sWstr}, 8192
    s_cselect_b64 s[{sExF}:{sExF+1}], 1, 0
    s_cmp_eq_u32 s{sW}, 0
    s_cselect_b64 s[{sExF}:{sExF+1}], s[{sExF}:{sExF+1}], 0
    s_cmp_eq_u32 s{sForm}, 0
    s_cbranch_scc0 G_loopV""")
    def epilogue(form, A):
        L = []
        if form == "T":
            for k in range(16): L.append(f"v_mul_f32 v{A+k}, s{sScale}, v{A+k}")
        for x in range(2):
            for k in range(4): L.append(cvt(A+8*x+k, A+8*x+2*k, A+8*x+2*k+1))
        return L
    def stores(A):
        return [f"buffer_store_dwordx4 {vr(A,4)}, v{vSt}, {D}, s{sD0} offen sc1", f"buffer_store_dwordx4 {vr(A+8,4)}, v{vSt}, {D}, s{sD1} offen sc1"]
    def xrd(f):
        t, aa = f >> 1, f & 1
        return f"ds_read_b128 {vr(XF+4*(f % NXF),4)}, v{vXr+(t&3)} offset:{aa*16384 + (t>>2)*256}"
    for form in ("T", "V"):
        g(f"G_loop{form}:")
        for p in range(2):
            A, B = ACC[p], ACC[1-p]
            g("s_waitcnt vmcnt(10)")
            g("s_barrier")
            LA = 6
            for f in range(LA): g(xrd(f))
            g(f"""s_add_u32 s{sT0}, s{sN}, 2
            s_cmp_lt_u32 s{sT0}, s{sNseg}
            s_cselect_b32 s{sT1}, s{sXstep}, 0
            s_add_u32 s{sXoff}, s{sXoff}, s{sT1}
            s_add_u32 s{sBuf}, s{sBuf}, 32768
            s_and_b32 s{sBuf}, s{sBuf}, 0x1ffff
            s_add_u32 s{sD1}, s{sD0}, s{sDdel}
            s_sub_i32 s{sT2}, s{sN}, 2
            s_max_i32 s{sT2}, s{sT2}, 0
            s_add_u32 s{sN}, s{sN}, 1
            s_and_b32 s{sT3}, s{sN}, 3
            s_lshl_b32 s{sT3}, s{sT3}, 15""")
            val = epilogue(form, B) + [f"v_mov_b32 v{vF}, s{sT2}"]
            nv = len(val)
            st = stores(B); dm = xdma(sBuf)
            second = {}
            f0 = (nv + 1) // 2 + 1
            second[f0] = [f"s_mov_b64 exec, s[{sExE}:{sExE+1}]", st[0], "s_mov_b64 exec, -1"]
            second[f0+2] = [f"s_mov_b64 exec, s[{sExE}:{sExE+1}]", st[1], "s_mov_b64 exec, -1"]
            second[f0+4] = [f"s_mov_b64 exec, s[{sExF}:{sExF+1}]", f"buffer_store_dword v{vF}, off, {W}, s{sFlag} sc1", "s_mov_b64 exec, -1"]
            for m in range(8): second[f0+5+m] = [dm[m][0], "s_nop 0", dm[m][1]]
            assert f0 + 13 <= 31
            for f in range(32):
                t, aa = f >> 1, f & 1
                xf = vr(XF+4*(f % NXF), 4)
                g(f"s_waitcnt lgkmcnt({min(LA-1, 31-f)})")
                for T in range(2):
                    wf = vr((T*16+t)*4, 4, "a")
                    acc = A + (8*aa + 4*T if form == "T" else 8*T + 4*aa)
                    C = vr(acc, 4) if t else "0"
                    g(f"{MF16} {vr(acc,4)}, {wf}, {xf}, {C}" if form == "T" else f"{MF16} {vr(acc,4)}, {xf}, {wf}, {C}")
                    if T == 0:
                        if f + LA < 32: g(xrd(f + LA))
                        elif f + LA - 32 < 4: g(f"v_add_u32 v{vXr+f+LA-32}, s{sT3}, v{vXr0+f+LA-32}")
                        if val: g(val.pop(0))
                    else:
                        if val: g(val.pop(0))
                        for x in second.get(f, []): g(x)
            g(f"s_and_b32 s{sT0}, s{sDstep}, s{sExE}")
            g(f"s_add_u32 s{sD0}, s{sD0}, s{sT0}")
            g(f"s_mov_b64 s[{sExE}:{sExE+1}], -1")
        g(f"s_cmp_lt_u32 s{sN}, s{sNseg}")
        g(f"s_cbranch_scc1 G_loop{form}")
        g(f"s_add_u32 s{sD1}, s{sD0}, s{sDdel}")
        for x in epilogue(form, ACC[1]) + stores(ACC[1]): g(x)
        if form == "T": g("s_branch G_end")
    g("G_end:")
    g("s_waitcnt vmcnt(0)")
    g("s_barrier")
    set_flag(g, sFlag, f"s{sNseg}", vF, one=True)
    tstamp(g, o, 2)
    return vSt

def gemm_setup(g, o, vSt):
    t0, t1, t2 = 81, 82, 83
    def lane_FL():
        g(f"""v_bfe_u32 v{t0}, v{vL}, 3, 1
        v_lshrrev_b32 v{t1}, 4, v{vL}
        v_and_b32 v{t2}, 7, v{vL}
        v_lshlrev_b32 v{vSt}, 9, v{t0}
        v_lshl_add_u32 v{vSt}, v{t1}, 7, v{vSt}
        v_lshl_add_u32 v{vSt}, v{t2}, 4, v{vSt}""")
    def ws_dst():
        for k in range(4): g(f"s_mov_b32 s{S_D+k}, s{S_WS+k}" if k < 3 else f"s_mov_b32 s{S_D+3}, 0x20000")
    g("W_entry:")
    g(f"""s_mov_b32 s{sPhase}, 1
    s_mov_b32 s{sNseg}, 32
    s_mov_b32 s{sXstep}, 65536
    s_and_b32 s{sT3}, s{sK}, 1
    s_lshl_b32 s{sXoff}, s{sT3}, 15
    s_mov_b32 s{sScale}, 1.0
    s_cmp_ge_u32 s{sK}, 216
    s_cbranch_scc1 FA_entry""")
    ws_dst()
    g(f"s_cmp_ge_u32 s{sK}, 192\ns_cbranch_scc1 W_a1")
    g(f"""s_lshr_b32 s{sT0}, s{sK}, 1
    s_mul_i32 s{sT1}, s{sT0}, 43691
    s_lshr_b32 s{sT1}, s{sT1}, 17
    s_mul_i32 s{sT2}, s{sT1}, 3
    s_sub_u32 s{sT2}, s{sT0}, s{sT2}
    s_lshl_b32 s{sWoff}, s{sT1}, 8
    s_mov_b32 s{sWstr}, 8192
    s_mov_b32 s{sPerm}, 0
    s_mov_b32 s{sDstep}, {2*262144}
    s_lshl_b32 s{sD0}, s{sT2}, 24
    s_lshl_b32 s{sT0}, s{sT1}, 13
    s_add_u32 s{sD0}, s{sD0}, s{sT0}
    s_lshl_b32 s{sT0}, s{sT3}, 18
    s_add_u32 s{sD0}, s{sD0}, s{sT0}
    s_lshl_b32 s{sFlag}, s{sT1}, 7
    s_lshl_b32 s{sT0}, s{sT2}, 3
    s_add_u32 s{sFlag}, s{sFlag}, s{sT0}
    s_lshl_b32 s{sT0}, s{sT3}, 2
    s_add_u32 s{sFlag}, s{sFlag}, s{sT0}
    s_add_u32 s{sFlag}, s{sFlag}, {FL_B}""")
    srd(g, S_X, 24, 2*MB_)
    lane_FL()
    g(f"s_cmp_eq_u32 s{sT2}, 2\ns_cbranch_scc1 W_bv")
    g(f"""s_mov_b32 s{sForm}, 0
    s_mov_b32 s{sDdel}, 4096
    s_lshl_b32 s{sT0}, s{sW}, 10
    s_add_u32 s{sD0}, s{sD0}, s{sT0}
    s_cmp_eq_u32 s{sT2}, 1
    s_cbranch_scc1 W_bk
    s_mov_b32 s{sScale}, {f32(CSCALE)}""")
    srd(g, S_WT, 40, 4*MB_); g("s_branch G_entry")
    g("W_bk:"); srd(g, S_WT, 48, 4*MB_); g("s_branch G_entry")
    g("W_bv:")
    g(f"""s_mov_b32 s{sForm}, 1
    s_mov_b32 s{sDdel}, 1024
    s_lshl_b32 s{sT0}, s{sW}, 11
    s_add_u32 s{sD0}, s{sD0}, s{sT0}""")
    srd(g, S_WT, 56, 4*MB_); g("s_branch G_entry")
    g("W_a1:")
    g(f"""s_sub_u32 s{sT0}, s{sK}, 192
    s_lshl_b32 s{sFlag}, s{sT0}, 2
    s_add_u32 s{sFlag}, s{sFlag}, {FL_A1}
    s_lshr_b32 s{sT0}, s{sT0}, 1
    s_lshl_b32 s{sWoff}, s{sT0}, 8
    s_mov_b32 s{sWstr}, 3072
    s_mov_b32 s{sDstep}, 2048
    s_lshl_b32 s{sD0}, s{sT0}, 19
    s_add_u32 s{sD0}, s{sD0}, {WS_AQ}
    s_lshl_b32 s{sT1}, s{sW}, 17
    s_add_u32 s{sD0}, s{sD0}, s{sT1}
    s_lshl_b32 s{sT1}, s{sT3}, 10
    s_add_u32 s{sD0}, s{sD0}, s{sT1}""")
    srd(g, S_X, 0, 2*MB_); srd(g, S_WT, 8, 512*3072)
    g(f"s_cmp_ge_u32 s{sT0}, 8\ns_cbranch_scc1 W_av")
    g(f"""s_mov_b32 s{sForm}, 0
    s_mov_b32 s{sPerm}, 1
    s_mov_b32 s{sDdel}, 128
    s_cmp_lt_u32 s{sT0}, 4
    s_cselect_b32 s{sScale}, {f32(ASCALE)}, 1.0
    v_lshrrev_b32 v{t0}, 5, v{vL}
    v_lshlrev_b32 v{vSt}, 16, v{t0}
    v_bfe_u32 v{t0}, v{vL}, 4, 1
    v_lshl_add_u32 v{vSt}, v{t0}, 9, v{vSt}
    v_bfe_u32 v{t0}, v{vL}, 3, 1
    v_lshl_add_u32 v{vSt}, v{t0}, 8, v{vSt}
    v_and_b32 v{t0}, 7, v{vL}
    v_lshl_add_u32 v{vSt}, v{t0}, 4, v{vSt}
    s_branch G_entry
    W_av:
    s_mov_b32 s{sForm}, 1
    s_mov_b32 s{sPerm}, 0
    s_mov_b32 s{sDdel}, 65536
    v_lshlrev_b32 v{vSt}, 4, v{vL}
    s_branch G_entry""")
    g("W_a3:")
    g(f"""s_mov_b32 s{sPhase}, 3
    s_mov_b32 s{sNseg}, 4
    s_mov_b32 s{sXstep}, 32768
    s_sub_u32 s{sT0}, s{sK}, 128
    s_and_b32 s{sT1}, s{sT0}, 3
    s_lshr_b32 s{sT0}, s{sT0}, 2
    s_lshl_b32 s{sXoff}, s{sT0}, 17
    s_add_u32 s{sXoff}, s{sXoff}, {WS_AO}
    s_mov_b32 s{sScale}, 1.0
    s_lshl_b32 s{sWoff}, s{sT1}, 8
    s_mov_b32 s{sWstr}, 1024
    s_mov_b32 s{sForm}, 0
    s_mov_b32 s{sPerm}, 1
    s_mov_b32 s{sDdel}, 32768
    s_mov_b32 s{sDstep}, 65536
    s_lshl_b32 s{sD0}, s{sT0}, 18
    s_add_u32 s{sD0}, s{sD0}, s{sWoff}
    s_lshl_b32 s{sT1}, s{sW}, 6
    s_add_u32 s{sD0}, s{sD0}, s{sT1}
    s_lshl_b32 s{sFlag}, s{sK}, 2
    s_add_u32 s{sFlag}, s{sFlag}, {FL_JUNK}
    v_and_b32 v{t0}, 15, v{vL}
    v_lshrrev_b32 v{t1}, 4, v{vL}
    v_lshlrev_b32 v{vSt}, 11, v{t0}
    v_lshl_add_u32 v{vSt}, v{t1}, 4, v{vSt}""")
    for k in range(4): g(f"s_mov_b32 s{S_X+k}, s{S_WS+k}" if k < 3 else f"s_mov_b32 s{S_X+3}, 0x20000")
    srd(g, S_WT, 16, 512*1024); srd(g, S_D, 80, 4*MB_)
    g("s_branch G_entry")

def gen_att(g, o):
    sHead, sPart, sQ0, sIt, sRetry, sVm = 24, 25, 26, 27, 28, 30
    Q = 0; KF = 12; VF = 20; P = 36; SB = 48; O = 80; C = 128; vK, vV, t0, t1, t2 = 176, 177, 178, 179, 180
    g("AT_entry:")
    g(f"""s_mul_i32 s{sHead}, s{sK}, 10923
    s_lshr_b32 s{sHead}, s{sHead}, 16
    s_mul_i32 s{sT0}, s{sHead}, 6
    s_sub_u32 s{sPart}, s{sK}, s{sT0}
    v_lshlrev_b32 v{t0}, 2, v{vL}
    v_cmp_gt_u32 vcc, 24, v{vL}
    v_cndmask_b32 v{t1}, 0, 32, vcc
    s_mov_b32 s{sT0}, {FL_A1}""")
    spin(g, "AT_w", t0, f"s{sT0}", t1, t2, one=True, sleep=16)
    tstamp(g, o, 3)
    g(f"""v_lshlrev_b32 v{vK}, 4, v{vL}
    s_lshl_b32 s{sT0}, s{sHead}, 16
    s_lshl_b32 s{sT1}, s{sW}, 10
    s_add_u32 s{sT0}, s{sT0}, s{sT1}
    s_add_u32 s{sT2}, s{sT0}, {WS_AK}
    s_add_u32 s{sT3}, s{sT0}, {WS_AV}
    s_barrier""")
    for m in range(16):
        g(f"""s_mov_b32 m0, s{sT1}
        s_nop 0
        buffer_load_dwordx4 v{vK}, {W}, s{sT2} offen sc1 lds
        s_add_u32 m0, s{sT1}, 65536
        s_add_u32 s{sT2}, s{sT2}, 4096
        buffer_load_dwordx4 v{vK}, {W}, s{sT3} offen sc1 lds
        s_add_u32 s{sT3}, s{sT3}, 4096
        s_add_u32 s{sT1}, s{sT1}, 4096""")
    g(f"""s_lshl_b32 s{sT0}, s{sPart}, 2
    s_add_u32 s{sT0}, s{sT0}, s{sW}
    s_mul_i32 s{sT1}, s{sT0}, 3
    s_lshl_b32 s{sT2}, s{sT0}, 1
    s_add_u32 s{sT2}, s{sT2}, 16
    s_cmp_lt_u32 s{sPart}, 4
    s_cselect_b32 s{sQ0}, s{sT1}, s{sT2}
    s_lshl_b32 s{sT0}, s{sHead}, 16
    s_lshl_b32 s{sT1}, s{sQ0}, 10
    s_add_u32 s{sT0}, s{sT0}, s{sT1}
    s_add_u32 s{sT0}, s{sT0}, {WS_AQ}""")
    for q in range(3): g(f"buffer_load_dwordx4 {vr(Q+4*q,4)}, v{vK}, {W}, s{sT0} offen offset:{1024*q} sc1")
    for k in range(16): g(f"v_mov_b32 v{VF+k}, 0x3f803f80")
    for k in range(0, 48, 2): g(f"v_mov_b64 {vr(C+k,2)}, 0")
    g(f"""s_mov_b32 s{sVm}, 0xffff
    s_mov_b32 s{sVm+1}, 0xffff
    s_mov_b32 s{sRetry}, {1 if False else 0}
    s_waitcnt vmcnt(0)
    s_barrier
    s_cmp_lt_u32 s{sPart}, 4
    s_cbranch_scc0 AT2_run""")
    def ex(r): return f"v_exp_f32 v{r}, v{r}"
    def krd(b, off): return f"ds_read_b128 {vr(KF+4*b,4)}, v{vK} offset:{off}"
    def vrd(b, off): return [f"s_mov_b64 exec, s[{sVm}:{sVm+1}]", f"ds_read_b128 {vr(VF+8*b,4)}, v{vV} offset:{off}",
                             f"ds_read_b128 {vr(VF+8*b+4,4)}, v{vV} offset:{off+512}", "s_mov_b64 exec, -1"]
    for NQ in (3, 2):
        N = f"AT{NQ}"
        g(f"{N}_run:")
        g(f"""v_lshlrev_b32 v{vK}, 4, v{vL}
        v_lshrrev_b32 v{t0}, 5, v{vL}
        v_and_b32 v{t1}, 15, v{vL}
        v_lshlrev_b32 v{vV}, 8, v{t0}
        v_lshl_add_u32 v{vV}, v{t1}, 4, v{vV}
        v_add_u32 v{vV}, 0x10000, v{vV}""")
        for k in range(0, 16*NQ, 2): g(f"v_mov_b64 {vr(O+k,2)}, 0")
        for k in range(4, 8, 2): g(f"v_mov_b64 {vr(P+k,2)}, 0")
        g(krd(0, 0))
        for x in vrd(0, 0) + vrd(1, 0): g(x)
        g(f"s_mov_b32 s{sIt}, 0")
        g("s_waitcnt lgkmcnt(0)")
        g(f"{MF32} {vr(SB,16)}, {vr(KF,4)}, {vr(Q,4)}, {vr(C,16)}")
        g(f"{N}_loop:")
        U = 2*NQ
        for u in range(U):
            b, q = divmod(u, NQ)
            S = SB + 16*(u & 1); S2 = SB + 16*((u+1) & 1)
            pb, pq = divmod((u - 1) % U, NQ)
            nb, nq = divmod((u + 1) % U, NQ)
            g(f"{MF32} {vr(O+16*pq,16)}, {vr(VF+8*pb+4,4)}, {vr(P+4,4)}, {vr(O+16*pq,16)}")
            if q == 0:
                g(krd(1-b, 1024*(b+1)))
                for x in vrd(1-b, 1024*(b+1)): g(x)
            for k in range(4): g(ex(S+k))
            if nq == 0: g("s_waitcnt lgkmcnt(0)")
            g(f"{MF32} {vr(S2,16)}, {vr(KF+4*nb,4)}, {vr(Q+4*nq,4)}, {vr(C+16*nq,16)}")
            for k in range(4, 8): g(ex(S+k))
            g(ex(S+8))
            for k in range(4): g(cvt(P+k, S+2*k, S+2*k+1))
            g(ex(S+9)); g(ex(S+10))
            g(f"{MF32} {vr(O+16*q,16)}, {vr(VF+8*b,4)}, {vr(P,4)}, {vr(O+16*q,16)}")
            for k in range(11, 16): g(ex(S+k))
            for k in range(4): g(cvt(P+4+k, S+8+2*k, S+8+2*k+1))
            if u == U - 1:
                g(f"v_add_u32 v{vK}, 2048, v{vK}\nv_add_u32 v{vV}, 2048, v{vV}")
            else: g("s_nop 1")
        g(f"""s_add_u32 s{sIt}, s{sIt}, 1
        s_cmp_lt_u32 s{sIt}, 32
        s_cbranch_scc1 {N}_loop""")
        g(f"{MF32} {vr(O+16*(NQ-1),16)}, {vr(VF+12,4)}, {vr(P+4,4)}, {vr(O+16*(NQ-1),16)}")
        g(f"s_cmp_eq_u32 s{sRetry}, 0\ns_cbranch_scc0 {N}_fin")
        g(f"v_subrev_u32 v{t0}, {(127-30) << 23}, v{O+8}")
        for q in range(1, NQ):
            g(f"v_subrev_u32 v{t1}, {(127-30) << 23}, v{O+16*q+8}\nv_max_u32 v{t0}, v{t0}, v{t1}")
        g(f"v_cmp_le_u32 vcc, {0 if o.force_slow else 90 << 23}, v{t0}")
        g(f"s_cbranch_vccz {N}_fin")
        g(f"s_mov_b32 s{sRetry}, 1\ns_mov_b32 s{sIt}, 0\nv_lshlrev_b32 v{vK}, 4, v{vL}")
        for q in range(NQ): g(f"v_mov_b32 v{O+q}, 0xff800000")
        g(f"{N}_max:")
        g(krd(0, 0)); g(f"v_add_u32 v{vK}, 1024, v{vK}"); g("s_waitcnt lgkmcnt(0)")
        for q in range(NQ):
            g(f"{MF32} {vr(SB,16)}, {vr(KF,4)}, {vr(Q+4*q,4)}, 0")
            for k in range(0, 16, 2): g(f"v_max3_f32 v{O+q}, v{O+q}, v{SB+k}, v{SB+k+1}")
        g(f"s_add_u32 s{sIt}, s{sIt}, 1\ns_cmp_lt_u32 s{sIt}, 64\ns_cbranch_scc1 {N}_max")
        for q in range(NQ):
            g(f"v_mov_b32 v{t0}, v{O+q}\nv_permlane32_swap_b32 v{O+q}, v{t0}\nv_max_f32 v{t0}, v{t0}, v{O+q}")
            for k in range(16): g(f"v_sub_f32 v{C+16*q+k}, 0, v{t0}")
        g(f"s_branch {N}_run")
        g(f"{N}_fin:")
        g(f"""v_bfe_u32 v{t0}, v{vL}, 3, 1
        v_lshlrev_b32 v{t1}, 14, v{t0}
        v_bfe_u32 v{t0}, v{vL}, 4, 1
        v_lshl_add_u32 v{t1}, v{t0}, 13, v{t1}
        v_and_b32 v{t0}, 7, v{vL}
        v_lshl_add_u32 v{t1}, v{t0}, 10, v{t1}
        v_lshrrev_b32 v{t0}, 5, v{vL}
        v_lshl_add_u32 v{t1}, v{t0}, 4, v{t1}
        s_lshl_b32 s{sT0}, s{sQ0}, 15
        s_lshl_b32 s{sT1}, s{sHead}, 5
        s_add_u32 s{sT0}, s{sT0}, s{sT1}
        s_add_u32 s{sT0}, s{sT0}, {WS_AO}""")
        for q in range(NQ):
            A = O + 16*q
            g(f"v_rcp_f32 v{t0}, v{A+8}")
            for k in range(8): g(f"v_mul_f32 v{A+k}, v{t0}, v{A+k}")
            for k in range(4): g(cvt(A+k, A+2*k, A+2*k+1))
            g(f"v_permlane32_swap_b32 v{A}, v{A+2}\nv_permlane32_swap_b32 v{A+1}, v{A+3}")
            g(f"buffer_store_dwordx4 {vr(A,4)}, v{t1}, {W}, s{sT0} offen sc1")
            g(f"s_add_u32 s{sT0}, s{sT0}, 32768")
        if NQ == 3: g("s_branch AT_end")
    g("AT_end:")
    g(f"""s_waitcnt vmcnt(0)
    s_barrier
    s_lshl_b32 s{sT0}, s{sK}, 2
    s_add_u32 s{sT0}, s{sT0}, {FL_A2}""")
    set_flag(g, sT0, 1, t0, one=True)
    tstamp(g, o, 4)

def gen_fa(g, o):
    sS, sBlk, sFl, sOut, sFo, sNn = 24, 25, 26, 27, 28, 29
    Q, K, V, KM, VM = 0, 32, 64, 96, 112
    SX = 128
    S00, S10, S11, SM0, SM1 = SX, SX+4, SX+8, SX+12, SX+16
    PX0, PX1, PM0, PM1 = 148, 152, 156, 158
    L0, L1, ONES, DM, MM, O = 160, 164, 168, 172, 176, 180
    vFL, vFa, vR1, vR2, vEx, vXr, vVm, t0, t1, t2, KR = 200, 201, 202, 203, 204, 205, 206, 207, 208, 209, 212
    M16 = "v_mfma_f32_16x16x16_bf16"
    g("FA_entry:")
    wait_init(g, "FA_init", t0, one=True)
    i, gg = t1, t2
    g(f"""s_sub_u32 s{sH}, s{sK}, 192
    v_and_b32 v{i}, 15, v{vL}
    v_lshrrev_b32 v{gg}, 4, v{vL}
    v_bfe_u32 v{t0}, v{vL}, 3, 1
    v_lshlrev_b32 v{vFL}, 9, v{t0}
    v_lshl_add_u32 v{vFL}, v{gg}, 7, v{vFL}
    v_and_b32 v{t0}, 7, v{vL}
    v_lshl_add_u32 v{vFL}, v{t0}, 4, v{vFL}
    v_lshlrev_b32 v{vFa}, 2, v{i}
    v_lshlrev_b32 v{vEx}, 4, v{vL}
    v_and_b32 v{t0}, 1, v{gg}
    v_mul_u32_u24 v{vVm}, {XPL}, v{t0}
    v_lshl_add_u32 v{vVm}, v{i}, 3, v{vVm}
    v_and_b32 v{t0}, 1, v{vL}
    v_mul_u32_u24 v{vXr}, {XPL}, v{t0}
    v_lshl_add_u32 v{vXr}, v{gg}, 5, v{vXr}
    v_bfe_u32 v{t0}, v{vL}, 2, 2
    v_lshl_add_u32 v{vXr}, v{t0}, 3, v{vXr}
    s_lshl_b32 s{sT0}, s{sW}, 12
    v_add_u32 v{vXr}, s{sT0}, v{vXr}
    v_mov_b32 v{KR}, {NEGBIG}
    v_cmp_lt_u32 vcc, 1, v{gg}
    v_lshlrev_b32 v{t0}, 2, v{gg}""")
    for k in range(4): g(f"v_cndmask_b32 v{MM+k}, 0, v{KR}, vcc")
    for k in range(4):
        g(f"v_cmp_gt_u32 vcc, v{t0}, v{i}\nv_cndmask_b32 v{DM+k}, 0, v{KR}, vcc\nv_add_u32 v{t0}, 1, v{t0}")
        g(f"v_mov_b32 v{ONES+k}, 0x3f803f80")
    g(f"v_mov_b64 {vr(PX0+2,2)}, 0")
    sM1, sM2 = 30, 32
    g(f"""s_and_b32 s{sT0}, s{sW}, 1
    s_lshl_b32 s{sM1}, 0x15, s{sT0}
    s_mov_b32 s{sM1+1}, 0
    s_mov_b64 s[{sM2}:{sM2+1}], 0xf00
    s_lshl_b32 s{sFl}, s{sH}, 7
    s_add_u32 s{sFl}, s{sFl}, {FL_B}
    s_lshl_b32 s{sFo}, s{sW}, 7
    s_lshl_b32 s{sT0}, s{sH}, 2
    s_add_u32 s{sFo}, s{sFo}, s{sT0}
    s_add_u32 s{sFo}, s{sFo}, {FL_FA}
    s_mov_b32 s{sS}, s{sW}
    s_mov_b32 s{sNn}, 0
    s_barrier""")
    g("FA_loop:")
    g(f"""s_lshr_b32 s{sT0}, s{sS}, 1
    s_add_u32 s{sT0}, s{sT0}, 1
    v_mov_b32 v{t0}, s{sT0}
    v_cndmask_b32 v{vR1}, 0, v{t0}, s[{sM1}:{sM1+1}]
    s_add_u32 s{sT0}, s{sS}, 1
    v_mov_b32 v{t0}, s{sT0}
    v_cndmask_b32 v{vR2}, 0, v{t0}, s[{sM2}:{sM2+1}]
    s_lshl_b32 s{sBlk}, s{sS}, 18
    s_lshl_b32 s{sT0}, s{sH}, 12
    s_add_u32 s{sOut}, s{sBlk}, s{sT0}
    s_add_u32 s{sBlk}, s{sOut}, s{sT0}
    s_add_u32 s{sOut}, s{sOut}, {WS_OX}""")
    spin(g, "FA_w1", vFa, f"s{sFl}", vR1, t0)
    for base, ws in ((Q, WS_QX), (K, WS_KX), (V, WS_VX)):
        g(f"s_add_u32 s{sT0}, s{sBlk}, {ws}\ns_add_u32 s{sT1}, s{sT0}, 4096")
        for n in range(8): g(f"buffer_load_dwordx4 {vr(base+4*n,4)}, v{vFL}, {W}, s{sT0 if n < 4 else sT1} offen offset:{1024*(n&3)} sc1")
    g("s_waitcnt vmcnt(8)")
    for D, kt, qt, C0 in ((S00, 0, 0, vr(DM,4)), (S10, 0, 1, "0"), (S11, 1, 1, vr(DM,4))):
        for b in range(4): g(f"{MF16} {vr(D,4)}, {vr(K+16*kt+4*b,4)}, {vr(Q+16*qt+4*b,4)}, {C0 if b == 0 else vr(D,4)}")
    spin(g, "FA_w2", vFa, f"s{sFl}", vR2, t0)
    g(f"s_add_u32 s{sT0}, s{sBlk}, {WS_EX}")
    g(f"buffer_load_dwordx4 {vr(KR,4)}, v{vEx}, {W}, s{sT0} offen sc1")
    g(f"buffer_load_dwordx4 {vr(KR+4,4)}, v{vEx}, {W}, s{sT0} offen offset:{XPL} sc1")
    for et in range(8): g(f"buffer_load_dwordx2 {vr(VM+2*et,2)}, v{vVm}, {W}, s{sT0} offen offset:{2*XPL+128*et} sc1")
    g(f"s_lshl_b32 s{sT0}, s{sW}, 12\nv_add_u32 v{t0}, s{sT0}, v{vEx}")
    g("s_waitcnt vmcnt(8)")
    g(f"ds_write_b128 v{t0}, {vr(KR,4)}\nds_write_b128 v{t0}, {vr(KR+4,4)} offset:{XPL}")
    g("s_waitcnt lgkmcnt(0)")
    for b in range(4):
        for x in range(2): g(f"ds_read_b64_tr_b16 {vr(KM+4*b+2*x,2)}, v{vXr} offset:{(32*b+16*x)*8}")
    g("s_waitcnt lgkmcnt(0)")
    for D, qt in ((SM0, 0), (SM1, 1)):
        for b in range(4): g(f"{MF16} {vr(D,4)}, {vr(KM+4*b,4)}, {vr(Q+16*qt+4*b,4)}, {vr(MM,4) if b == 0 else vr(D,4)}")
    for qt, regs in ((0, [S00+k for k in range(4)] + [SM0+k for k in range(4)]), (1, [S10+k for k in range(8)] + [SM1+k for k in range(4)])):
        g(f"v_max3_f32 v{t0}, v{regs[0]}, v{regs[1]}, v{regs[2]}")
        for k in range(3, len(regs)-1, 2): g(f"v_max3_f32 v{t0}, v{t0}, v{regs[k]}, v{regs[k+1]}")
        g(f"v_max_f32 v{t0}, v{t0}, v{regs[-1]}")
        for sw in ("v_permlane32_swap_b32", "v_permlane16_swap_b32"):
            g(f"v_mov_b32 v{t1}, v{t0}\n{sw} v{t0}, v{t1}\nv_max_f32 v{t0}, v{t0}, v{t1}")
        for r in regs: g(f"v_sub_f32 v{r}, v{r}, v{t0}")
        for r in regs: g(f"v_exp_f32 v{r}, v{r}")
        px, pm = (PX0, PM0) if qt == 0 else (PX1, PM1)
        for k in range((len(regs) - 4) // 2): g(cvt(px+k, regs[2*k], regs[2*k+1]))
        for k in range(2): g(cvt(pm+k, regs[-4+2*k], regs[-3+2*k]))
        L = (L0, L1)[qt]
        g(f"{MF16} {vr(L,4)}, {vr(ONES,4)}, {vr(px,4)}, 0")
        g(f"{M16} {vr(L,4)}, {vr(ONES,2)}, {vr(pm,2)}, {vr(L,4)}")
    g("s_waitcnt vmcnt(0)")
    g(f"v_rcp_f32 v{L0}, v{L0}\nv_rcp_f32 v{L1}, v{L1}")
    units = [(qt, b) for qt in range(2) for b in range(4)]
    def pv(n):
        qt, b = units[n]; A = O + 8*(n & 1)
        px, pm = (PX0, PM0) if qt == 0 else (PX1, PM1)
        for T in range(2): g(f"{MF16} {vr(A+4*T,4)}, {vr(V+4*(2*b+T),4)}, {vr(px,4)}, 0")
        for T in range(2): g(f"{M16} {vr(A+4*T,4)}, {vr(VM+2*(2*b+T),2)}, {vr(pm,2)}, {vr(A+4*T,4)}")
    pv(0)
    for n, (qt, b) in enumerate(units):
        A = O + 8*(n & 1); Z = Q + 4*n
        if n + 1 < 8: pv(n + 1)
        for k in range(8): g(f"v_mul_f32 v{A+k}, v{(L0, L1)[qt]}, v{A+k}")
        for k in range(4): g(cvt(Z+k, A+2*k, A+2*k+1))
        if n == 4: g(f"s_add_u32 s{sOut}, s{sOut}, 131072")
        g(f"buffer_store_dwordx4 {vr(Z,4)}, v{vEx}, {W}, s{sOut} offen offset:{1024*b} sc1")
    g(f"s_add_u32 s{sNn}, s{sNn}, 1\ns_add_u32 s{sS}, s{sS}, 4")
    g("s_waitcnt vmcnt(0)")
    set_flag(g, sFo, f"s{sNn}", t0)
    g(f"s_cmp_lt_u32 s{sNn}, 16\ns_cbranch_scc1 FA_loop")
    tstamp(g, o, 5)
    g("s_endpgm")

def gen_fg(g, o, NG=8):
    S_WO, S_OUT = 24, 28
    sIt, sCg, sPar = 32, 33, 34
    XF = 0; A = 128; R = 136; vEx, vFa, vRq, vSt, vLw, t0, t1, t2 = 160, 161, 162, 163, 164, 165, 166, 167
    g("FG_entry:")
    srd(g, S_WO, 64, 4*MB_); srd(g, S_OUT, 80, 4*MB_)
    g(f"""s_and_b32 s{sCg}, s{sK}, 15
    s_lshr_b32 s{sIt}, s{sK}, 4
    v_lshrrev_b32 v{t0}, 2, v{vL}
    v_and_b32 v{t1}, 3, v{vL}
    v_lshlrev_b32 v{t2}, 10, v{t0}
    v_lshl_add_u32 v{t2}, v{t1}, 4, v{t2}
    v_lshlrev_b32 v{vEx}, 4, v{vL}
    s_lshl_b32 s{sT3}, s{sW}, 15
    v_add_u32 v{t0}, s{sT3}, v{vEx}
    s_lshl_b32 s{sT0}, s{sW}, 20
    s_lshl_b32 s{sT1}, s{sCg}, 6
    s_add_u32 s{sT0}, s{sT0}, s{sT1}
    s_waitcnt lgkmcnt(0)
    s_barrier""")
    for ps in range(2):
        for m in range(32):
            g(f"""s_add_u32 m0, s{sT3}, {1024*m}
            s_nop 0
            buffer_load_dwordx4 v{t2}, s[{S_WO}:{S_WO+3}], s{sT0} offen lds
            s_add_u32 s{sT0}, s{sT0}, 16384""")
        g("s_waitcnt vmcnt(0)")
        for ks in range(16):
            for T in range(2):
                for hh in range(2):
                    g(f"ds_read_b64_tr_b16 {vr(((16*ps+ks)*2+T)*4+2*hh, 2, 'a')}, v{t0} offset:{(32*ks+16*hh)*64 + 8*T}")
            if ks % 2 == 1: g("s_waitcnt lgkmcnt(0)")
    g(f"""v_and_b32 v{t0}, 7, v{vL}
    s_lshl_b32 s{sT0}, s{sW}, 3
    v_add_u32 v{t0}, s{sT0}, v{t0}
    v_lshlrev_b32 v{vFa}, 2, v{t0}
    v_and_b32 v{t0}, 15, v{vL}
    v_lshrrev_b32 v{t1}, 4, v{vL}
    v_lshlrev_b32 v{vSt}, 11, v{t0}
    v_lshl_add_u32 v{vSt}, v{t1}, 4, v{vSt}
    s_lshl_b32 s{sT0}, s{sW}, 11
    v_add_u32 v{vLw}, s{sT0}, v{vEx}
    s_mov_b32 s{sPar}, 0
    s_barrier""")
    tstamp(g, o, 5)
    g("FG_loop:")
    g(f"""s_lshr_b32 s{sT0}, s{sIt}, 3
    s_add_u32 s{sT0}, s{sT0}, 1
    v_mov_b32 v{vRq}, s{sT0}
    s_lshr_b32 s{sT0}, s{sIt}, 1
    s_and_b32 s{sT0}, s{sT0}, 3
    s_lshl_b32 s{sT0}, s{sT0}, 7
    s_add_u32 s{sT0}, s{sT0}, {FL_FA}""")
    spin(g, "FG_w", vFa, f"s{sT0}", vRq, t0)
    g(f"""s_lshl_b32 s{sT0}, s{sIt}, 17
    s_lshl_b32 s{sT1}, s{sW}, 15
    s_add_u32 s{sT0}, s{sT0}, s{sT1}
    s_add_u32 s{sT0}, s{sT0}, {WS_OX}""")
    for n in range(32):
        g(f"buffer_load_dwordx4 {vr(XF+4*n,4)}, v{vEx}, {W}, s{sT0} offen offset:{1024*(n&3)} sc1")
        if n % 4 == 3: g(f"s_add_u32 s{sT0}, s{sT0}, 4096")
    for n in range(32):
        g(f"s_waitcnt vmcnt({31-n})")
        for T in range(2): g(f"{MF16} {vr(A+4*T,4)}, {vr((2*n+T)*4,4,'a')}, {vr(XF+4*n,4)}, {vr(A+4*T,4) if n else 0}")
    g(f"v_add_u32 v{t0}, s{sPar}, v{vLw}\nv_add_u32 v{t1}, s{sPar}, v{vEx}")
    g(f"ds_write_b128 v{t0}, {vr(A,4)}\nds_write_b128 v{t0}, {vr(A+4,4)} offset:1024")
    g(f"""s_waitcnt lgkmcnt(0)
    s_barrier
    s_cmp_eq_u32 s{sW}, 0
    s_cbranch_scc0 FG_next""")
    for k in range(6): g(f"ds_read_b128 {vr(R+4*k,4)}, v{t1} offset:{2048+1024*k}")
    g(f"""s_lshl_b32 s{sT0}, s{sIt}, 15
    s_lshl_b32 s{sT1}, s{sCg}, 6
    s_add_u32 s{sT0}, s{sT0}, s{sT1}
    s_waitcnt lgkmcnt(0)""")
    for w_ in range(3):
        for k in range(8): g(f"v_add_f32 v{A+k}, v{A+k}, v{R+8*w_+k}")
    for k in range(4): g(cvt(R+k, A+2*k, A+2*k+1))
    g(f"buffer_store_dwordx4 {vr(R,4)}, v{vSt}, s[{S_OUT}:{S_OUT+3}], s{sT0} offen offset:1024")
    g(f"""FG_next:
    s_xor_b32 s{sPar}, s{sPar}, 8192
    s_add_u32 s{sIt}, s{sIt}, {NG}
    s_cmp_lt_u32 s{sIt}, 128
    s_cbranch_scc1 FG_loop""")
    tstamp(g, o, 6)
    g("s_endpgm")
```

```python
import sys, math
from asmgen import *

from cfg import *
import roles

class Opt:
    nsteps = 64
    prof = 0
    ronly = 0
    dbg_m = False
    stamps = False
    rdelay = 20
    b0 = 1
    force_slow = 0
    nofar = 0
    noexp = 0
    pdelay = 12
    pgap = 0
    sel = []
    rgap = 0
    uspread = 1
    rt = 0
    noreset = 0
    rs = 8192
    rwait = 2

def gen_R(g, o):
    vQ, vIdx, vMrd, vXwr, vXrd, vKrd, vOwr, vWo, vJ, vPst, vMst, vMask = range(12)
    V = 12; AQ, AK, AV = 20, 24, 28; KX = 32; MF = 64
    def M(t): return MF + 4*t
    T = MF
    TMP1 = MF + 32
    perm = [("q",1),("q",2),("q",3),("k",0),("k",1),("k",2),("v",0),("v",1),("v",2),("v",3),("o",0),("o",1)]
    loc = {key: (("a", 32*n) if n < 8 else ("v", 128 + 32*(n-8))) for n, key in enumerate(perm)}
    ploc = dict(loc); ploc[("q",0)] = ("v", KX); ploc[("k",3)] = ("v", TMP1)
    slot = {("q",0): 0, ("k",3): 1, ("o",2): 2, ("o",3): 3}
    order = [(m, c) for m in "qkvo" for c in range(4)]
    def wfrag(mat, r, f):
        k, b = loc[(mat, r)]
        return vr(b + 8*f, 8, k)
    sT0, sT1, sT2, sT3 = 20, 21, 22, 23
    sPw, sPh, sExw, sMr, sMw, sMz, sKV, sEx, sRange, sM0k = 24, 25, 26, 27, 28, 29, 30, 31, 32, 33
    sO1, sO2, sO3, sMoff = 34, 35, 36, 37
    sMaskOdd, sMaskD, sMaskLo8 = 38, 40, 48
    sC, sPoff, sRoff = 50, 51, 3
    sVc, sFlB, sKn, sVn, sFailA, sFlE, sReq = 52, 53, 54, 55, 56, 57, 58
    S_Q, S_K, S_V, S_O = 52, 56, 60, 64
    sSt = 68
    W = f"s[{S_WS}:{S_WS+3}]"
    g("R_entry:")
    srd(g, S_Q, 40, 4*MB_); srd(g, S_K, 48, 4*MB_); srd(g, S_V, 56, 4*MB_); srd(g, S_O, 64, 4*MB_)
    srd(g, S_A, 32, 8192)
    g(f"""v_and_b32 v{T}, 63, v0
    v_and_b32 v{T+1}, 15, v0
    v_lshrrev_b32 v{T+2}, 4, v{T}
    v_lshrrev_b32 v{T+3}, 2, v{T+1}
    v_and_b32 v{T+4}, 3, v0""")
    l, i, gg, a, c = T, T+1, T+2, T+3, T+4
    vDq, vDo, vTq, vTo, t0, t1, t2, vTT = T+5, T+6, T+7, T+8, T+9, T+10, T+11, T+16
    g(f"""s_and_b32 s{sT0}, s{sW}, 1
    s_lshl_b32 s{sT0}, s{sT0}, 3
    v_and_b32 v{t0}, 1, v{gg}
    v_lshlrev_b32 v{t0}, 2, v{t0}
    v_or_b32 v{t0}, s{sT0}, v{t0}
    v_xor_b32 v{t0}, v{t0}, v{i}
    v_lshlrev_b32 v{t0}, 4, v{t0}
    v_lshl_add_u32 v{vDq}, v{gg}, 13, v{t0}
    s_lshl_b32 s{sT0}, s{sW}, 15
    v_add_u32 v{vDq}, s{sT0}, v{vDq}""")
    g(f"""s_and_b32 s{sT0}, s{sW}, 1
    s_lshr_b32 s{sT1}, s{sW}, 1
    s_lshl_b32 s{sT1}, s{sT1}, 4
    s_add_u32 s{sT3}, s{sT0}, s{sT1}
    s_lshl_b32 s{sT3}, s{sT3}, 10
    s_lshl_b32 s{sT0}, s{sW}, 2
    v_xor_b32 v{vDo}, s{sT0}, v{l}
    v_lshlrev_b32 v{vDo}, 4, v{vDo}
    v_add_u32 v{vDo}, s{sT3}, v{vDo}""")
    g("s_waitcnt lgkmcnt(0)")
    def dma_chunk(n):
        mat, cc = order[n]
        base = L_W + (n & 3) * 32768
        if mat != "o":
            S = {"q": S_Q, "k": S_K, "v": S_V}[mat]
            g(f"s_lshl_b32 s{sT0}, s{sH}, 8")
            g(f"s_add_u32 s{sT0}, s{sT0}, {(64*(cc>>1) + 16*(cc&1))*8192}")
            g(f"s_lshl_b32 s{sT1}, s{sW}, 10")
            g(f"s_add_u32 s{sT1}, s{sT1}, {base}")
            for mm in range(8):
                g(f"s_mov_b32 m0, s{sT1}")
                g(f"s_add_u32 s{sT1}, s{sT1}, 4096")
                g(f"buffer_load_dwordx4 v{vDq}, s[{S}:{S+3}], s{sT0} offen lds")
                g(f"s_add_u32 s{sT0}, s{sT0}, {(32 if mm % 2 == 0 else 96)*8192}")
        else:
            g(f"v_add_u32 v{t0}, {cc}, v{gg}")
            g(f"v_and_b32 v{t0}, 3, v{t0}")
            g(f"v_lshl_add_u32 v{t0}, v{t0}, 15, v{vDo}")
            g(f"s_lshl_b32 s{sT0}, s{sH}, 17")
            g(f"s_add_u32 s{sT1}, s{sT3}, {base}")
            for mm in range(8):
                g(f"s_mov_b32 m0, s{sT1}")
                g(f"s_add_u32 s{sT1}, s{sT1}, 2048")
                g(f"buffer_load_dwordx4 v{t0}, s[{S_O}:{S_O+3}], s{sT0} offen lds")
                g(f"s_add_u32 s{sT0}, s{sT0}, 2048")
    dma_chunk(0)
    ih = T+17; i7 = T+18; gh = T+19; gl = T+20
    g(f"""v_lshrrev_b32 v{ih}, 3, v{i}
    v_and_b32 v{i7}, 7, v{i}
    v_lshrrev_b32 v{gh}, 1, v{gg}
    v_and_b32 v{gl}, 1, v{gg}
    v_lshlrev_b32 v{vKrd}, 4, v{l}
    v_lshlrev_b32 v{t0}, 4, v{i7}
    v_lshl_add_u32 v{vMrd}, v{gg}, 7, v{t0}
    v_lshl_add_u32 v{vQ}, v{ih}, 9, v{vMrd}
    s_lshl_b32 s{sT0}, s{sW}, 11
    v_add_u32 v{vQ}, s{sT0}, v{vQ}
    v_cmp_gt_u32 s[{sMaskLo8}:{sMaskLo8+1}], 8, v{i}
    v_mov_b32 v{t0}, 0xeeeeeeee
    v_mov_b32 v{t1}, 0x44444444
    v_cndmask_b32 v{vIdx}, v{t0}, v{t1}, s[{sMaskLo8}:{sMaskLo8+1}]
    v_lshl_add_u32 v{vOwr}, v{ih}, 3, v{vMrd}
    s_lshl_b32 s{sT0}, s{sW}, 9
    v_add_u32 v{vOwr}, s{sT0}, v{vOwr}
    v_lshl_add_u32 v{vXwr}, v{gh}, 4, v{i}
    v_lshlrev_b32 v{vXwr}, 3, v{vXwr}
    v_mul_u32_u24 v{t0}, {XPL}, v{gl}
    v_add_u32 v{vXwr}, v{vXwr}, v{t0}
    s_lshl_b32 s{sT0}, s{sW}, 8
    v_add_u32 v{vXwr}, s{sT0}, v{vXwr}
    v_mul_u32_u24 v{vPst}, {4*o.rs if o.uspread else o.rs}, v{gh}
    v_mul_u32_u24 v{t0}, {2*o.rs if o.uspread else 4096}, v{ih}
    v_add_u32 v{vPst}, v{t0}, v{vPst}
    v_mul_u32_u24 v{t0}, {o.rs if o.uspread else 2048}, v{gl}
    v_add_u32 v{vPst}, v{t0}, v{vPst}
    v_lshl_add_u32 v{vPst}, v{i7}, 3, v{vPst}
    s_mul_i32 s{sT0}, s{sW}, {8*o.rs}
    v_add_u32 v{vPst}, s{sT0}, v{vPst}
    s_mul_i32 s{sRoff}, s{sH}, {o.rs}
    v_lshlrev_b32 v{vMst}, 4, v{gg}
    v_lshl_add_u32 v{vMst}, v{c}, 2, v{vMst}
    s_lshl_b32 s{sT0}, s{sW}, {9 if o.uspread else 6}
    v_add_u32 v{vMst}, s{sT0}, v{vMst}
    v_lshl_add_u32 v{vXrd}, v{gg}, 2, v{a}
    v_lshlrev_b32 v{vXrd}, 3, v{vXrd}
    v_mul_u32_u24 v{t0}, {XPL}, v{c}
    v_add_u32 v{vXrd}, v{vXrd}, v{t0}
    s_lshl_b32 s{sT0}, s{sW}, 13
    s_add_u32 s{sT0}, s{sT0}, {L_W}
    v_add_u32 v{vWo}, s{sT0}, v{vKrd}
    v_mov_b32 v{t0}, 0xf149f2ca
    v_cmp_gt_u32 vcc, 2, v{gg}
    v_cndmask_b32 v{vMask}, 0, v{t0}, vcc
    v_and_b32 v{t0}, 1, v{a}
    v_cmp_eq_u32 s[{sMaskOdd}:{sMaskOdd+1}], 1, v{t0}
    v_lshrrev_b32 v{t0}, 1, v{a}
    v_lshl_add_u32 v{t0}, v{c}, 1, v{t0}""")
    for d in range(4):
        g(f"v_cmp_eq_u32 s[{sMaskD+2*d}:{sMaskD+2*d+1}], {d}, v{t0}")
    for r, s_ in ((1, sO1), (2, sO2), (3, sO3)):
        g(f"s_add_u32 s{s_}, s{sW}, {r}\ns_and_b32 s{s_}, s{s_}, 3\ns_lshl_b32 s{s_}, s{s_}, 9")
    g(f"s_mov_b32 s{sC}, {f32(CSCALE)}")
    g(f"s_lshl_b32 s{sPoff}, s{sH}, 6")
    if o.uspread:
        g(f"""s_lshr_b32 s{sT0}, s{sH}, 3
        s_lshl_b32 s{sMoff}, s{sT0}, 11
        s_and_b32 s{sT0}, s{sH}, 7
        s_lshl_b32 s{sT0}, s{sT0}, 6
        s_add_u32 s{sMoff}, s{sMoff}, s{sT0}""")
    else:
        g(f"s_lshl_b32 s{sMoff}, s{sH}, 8")
    g(f"""v_and_b32 v{t0}, 1, v{a}
    v_lshl_add_u32 v{t2}, v{gl}, 1, v{t0}
    v_lshrrev_b32 v{vTT}, 1, v{a}
    v_lshlrev_b32 v{vTq}, 5, v{vTT}
    v_lshl_add_u32 v{vTq}, v{c}, 3, v{vTq}
    v_lshl_add_u32 v{vTo}, v{t2}, 6, v{vTq}
    v_xor_b32 v{t2}, s{sW}, v{t2}
    v_lshl_add_u32 v{vTq}, v{t2}, 6, v{vTq}
    v_lshl_add_u32 v{vTq}, v{t0}, 8, v{vTq}
    v_lshl_add_u32 v{vTq}, v{gg}, 10, v{vTq}
    v_lshl_add_u32 v{vTo}, v{t0}, 10, v{vTo}
    v_lshl_add_u32 v{vTo}, v{gl}, 14, v{vTo}
    v_lshl_add_u32 v{vTo}, v{gh}, 12, v{vTo}
    s_lshl_b32 s{sT0}, s{sW}, 8
    v_add_u32 v{vTo}, s{sT0}, v{vTo}""")
    SN = T+12
    for k in range(4): g(f"v_mov_b32 v{SN+k}, -1")
    g(f"s_add_u32 s{sT0}, s{sRoff}, {WS_PART}")
    for k in range(4): g(f"v_not_b32 v{T+24+k}, v{a}")
    for hf in range(2):
        g(f"buffer_store_dwordx4 {vr(T+24,4)}, v{vQ}, {W}, s{sT0} offen offset:{1024*hf} sc1")
    g(f"s_add_u32 s{sT0}, s{sMoff}, {WS_M}")
    for sl in range(4):
        g(f"buffer_store_dword v{SN}, v{vMst}, {W}, s{sT0} offen sc1")
        g(f"s_add_u32 s{sT0}, s{sT0}, 8192")
    g(f"""v_mov_b32 v{t0}, 0
    v_lshlrev_b32 v{t1}, 2, v{l}
    s_lshl_b32 s{sT0}, s{sH}, 8
    s_add_u32 s{sT0}, s{sT0}, {WS_FL}""")
    if not o.ronly: g(f"buffer_store_dword v{t0}, v{t1}, {W}, s{sT0} offen sc1")
    for n in range(1, 4): dma_chunk(n)
    g(f"s_add_u32 s{sMoff}, s{sMoff}, {WS_M}\ns_add_u32 s{sRoff}, s{sRoff}, {WS_PART}\ns_add_u32 s{sPoff}, s{sPoff}, {WS_PART}")
    for n in range(16):
        mat, cc = order[n]
        base = L_W + (n & 3) * 32768
        rem = min(3, 15 - n) * 8
        g(f"s_waitcnt vmcnt({rem})")
        g("s_barrier")
        if n == 0:
            g(f"""s_cmp_eq_u32 s{sW}, 0
            s_cbranch_scc0 R_noinit
            v_mov_b32 v{t0}, 4
            v_mov_b32 v{t1}, 1
            s_mov_b64 exec, 1
            buffer_atomic_add v{t1}, v{t0}, s[{S_DBG}:{S_DBG+3}], 0 offen
            s_mov_b64 exec, -1
            R_noinit:""")
        if mat == "o":
            k, b = loc[(mat, cc)] if cc < 2 else ("v", KX)
            for u in range(4):
                if cc == 0:
                    g(f"v_mul_u32_u24 v{t0}, {16384+128}, v{vTT}")
                    g(f"v_xor_b32 v{t0}, v{t0}, v{vTo}")
                    g(f"v_xor_b32 v{t0}, {64*u}, v{t0}")
                else:
                    g(f"v_xor_b32 v{t0}, {64*u}, v{vTo}")
                g(f"v_add_u32 v{t0}, {base}, v{t0}")
                for hh in range(2):
                    for dd in range(2):
                        g(f"ds_read_b64_tr_b16 {vr(b + 8*u + 4*hh + 2*dd, 2, k)}, v{t0} offset:{(8*hh + 2*dd)*1024}")
                if u == 1: g("s_waitcnt lgkmcnt(0)")
        else:
            mm_, hh = cc >> 1, cc & 1
            for r in range(4):
                k, b = ploc[(mat, r)]
                if r == 0: g(f"s_lshl_b32 s{sT0}, s{sW}, 13")
                else: g(f"s_lshl_b32 s{sT0}, s{(sO1,sO2,sO3)[r-1]}, 4")
                g(f"s_add_u32 s{sT0}, s{sT0}, {base}")
                g(f"v_add_u32 v{t0}, s{sT0}, v{vTq}")
                if r == 0:
                    g(f"v_lshl_add_u32 v{t0}, v{vTT}, 12, v{t0}")
                    g(f"v_xor_b32 v{t1}, 4096, v{t0}")
                for x in range(2):
                    for dd in range(2):
                        ad, off = (t0, 4096*x + 512*dd) if r else ((t0, t1)[x], 512*dd)
                        g(f"ds_read_b64_tr_b16 {vr(b + 8*(2*mm_+x) + 4*hh + 2*dd, 2, k)}, v{ad} offset:{off}")
                if r == 1: g("s_waitcnt lgkmcnt(0)")
        g("s_waitcnt lgkmcnt(0)")
        g("s_barrier")
        if n < 12:
            dma_chunk(n + 4)
        else:
            src = {12: KX, 13: TMP1, 14: KX, 15: KX}[n]
            g(f"v_add_u32 v{t0}, {(n&3)*32768}, v{vWo}")
            for f in range(8):
                g(f"ds_write_b128 v{t0}, {vr(src+4*f,4)} offset:{1024*f}")
            g("s_waitcnt lgkmcnt(0)")
    def lds_w(mat, cc, f, hf):
        return slot[(mat, cc)]*32768 + f*2048 + hf*1024
    roles.tstamp(g, o, 1, t0)
    roles.wait_init(g, "R_init", t0)
    g(f"""s_lshl_b32 s{sFlB}, s{sH}, 7
    s_add_u32 s{sFlB}, s{sFlB}, {FL_B + 8}
    s_lshl_b32 s{sT0}, s{sW}, 2
    s_add_u32 s{sFlE}, s{sFlB}, s{sT0}
    s_add_u32 s{sFlE}, s{sFlE}, 24
    v_lshlrev_b32 v{t0}, 2, v{c}
    v_mov_b32 v{t1}, 1""")
    roles.spin(g, "R_kv0", t0, f"s{sFlB}", t1, t2)
    roles.tstamp(g, o, 2, t0)
    g(f"""v_lshl_add_u32 v{t0}, v{ih}, 2, v{gg}
    v_lshlrev_b32 v{t0}, 4, v{t0}
    v_lshl_add_u32 v{vJ}, v{i7}, 10, v{t0}
    s_lshl_b32 s{sT0}, s{sW}, 8
    buffer_load_dwordx4 {vr(M(0),4)}, v{vJ}, s[{S_A}:{S_A+3}], s{sT0} offen
    buffer_load_dwordx4 {vr(M(2),4)}, v{vJ}, s[{S_A}:{S_A+3}], s{sT0} offen offset:128
    s_lshl_b32 s{sKV}, s{sH}, 13
    s_add_u32 s{sT0}, s{sKV}, {WS_KX}
    s_lshl_b32 s{sM0k}, s{sW}, 11
    s_mov_b32 m0, s{sM0k}
    s_nop 0
    buffer_load_dwordx4 v{vQ}, {W}, s{sT0} offen sc1 lds
    buffer_load_dwordx4 v{vQ}, {W}, s{sT0} offen offset:1024 sc1 lds
    s_mov_b32 s{sStep}, 0
    s_mov_b32 s{sFailA}, 0
    s_lshl_b32 s{sT0}, s{sW}, 10
    s_sub_u32 s{sExw}, {WS_EX}, s{sT0}""")
    stampn = [0]
    o.stamp_names = []
    def stamp(name="", lvl=1):
        if (o.stamps >= lvl and not o.sel) or (name in o.sel and name not in o.stamp_names):
            n = stampn[0]; stampn[0] += 1
            assert n < 13
            o.stamp_names.append(name)
            g(f"{'s_memrealtime' if o.rt else 's_memtime'} s[{sSt+2*n}:{sSt+2*n+1}]")
    X = M(0); SX1 = M(4); PX = M(5); PM = M(6); O0 = M(7); O1 = M(8); LL = M(9); ONES = M(10); VV = M(11)
    vW2 = PM + 2; RC = PM + 3
    KE = M(13)
    WOL = {(2,0): M(12), (3,0): M(14), (2,1): KX, (3,1): KX+8, (2,2): KX+16, (3,2): KX+24, (2,3): M(0), (3,3): M(2)}
    RA = (M(1), M(3)); RB = (M(5), M(6)); SEL = M(9); DD = M(10); CK = M(8); SN = ONES
    def idle_work():
        L = []
        for f in range(8): L.append(f"ds_read_b128 {vr(KX+4*f,4)}, v{vWo} offset:{lds_w('q',0,f>>1,f&1)}")
        for k in range(0, 12, 2): L.append(f"v_mov_b64 {vr(AQ+k,2)}, 0")
        return L
    def addr_work():
        L = []
        for r, s_ in ((1, sO1), (2, sO2), (3, sO3)):
            L.append(f"v_lshl_add_u32 v{MA[r]}, s{s_}, 2, v{vMrd}")
        L.append(f"v_mov_b32 v{MA[3]+3}, -1")
        return L
    MA = {1: M(7), 2: M(15)+2, 3: M(15)}
    for x in idle_work() + addr_work(): g(x)
    def pf_addr():
        return [f"v_lshlrev_b32 v{MA[3]+1}, 3, v{vKrd}", f"v_and_b32 v{MA[3]+1}, 0x7ff, v{MA[3]+1}",
                f"s_sub_u32 s{sT0}, s{sFlB}, s{sVn}", "s_mov_b64 exec, 0xf0000",
                f"v_lshrrev_b32 v{MA[3]+1}, 5, v{MA[3]+1}", f"v_add_u32 v{MA[3]+1}, s{sT0}, v{MA[3]+1}", "s_mov_b64 exec, -1",
                f"v_writelane_b32 v{vJ}, s{sStep}, 20"]
    def step_scalars():
        return [x.strip() for x in (f"""s_xor_b32 s{sPh}, s{sStep}, s{sH}
        s_and_b32 s{sPh}, s{sPh}, 1
        s_mov_b32 s{sPw}, s{sPoff}
        s_lshl_b32 s{sT3}, s{sH}, 13
        s_add_u32 s{sT0}, s{sStep}, 3
        s_and_b32 s{sT0}, s{sT0}, 3
        s_lshl_b32 s{sMz}, s{sT0}, 13
        s_add_u32 s{sMz}, s{sMz}, s{sMoff}
        s_add_u32 s{sEx}, s{sKV}, {WS_EX}
        s_add_u32 s{sVc}, s{sKV}, {WS_VX}
        s_add_u32 s{sT1}, s{sStep}, 1
        s_min_u32 s{sT1}, s{sT1}, {0 if o.nofar else 63}
        s_lshl_b32 s{sT1}, s{sT1}, 18
        s_add_u32 s{sKV}, s{sT1}, s{sT3}
        s_add_u32 s{sKn}, s{sKV}, {WS_KX}
        s_lshl_b32 s{sT2}, s{sW}, 11
        s_add_u32 s{sVn}, s{sKV}, s{sT2}
        s_add_u32 s{sVn}, s{sVn}, {WS_VX}
        s_xor_b32 s{sM0k}, s{sM0k}, 8192
        s_mov_b32 m0, s{sM0k}
        s_cmp_eq_u32 s{sStep}, {o.nsteps-1}
        s_cselect_b32 s{sRange}, 0, {0 if o.force_slow else 48 << 23}""").split("\n")]
    for x in step_scalars() + pf_addr(): g(x)
    g("s_waitcnt vmcnt(0) lgkmcnt(0)")
    g("s_barrier")
    def smf(acc, A, B): g(f"v_smfmac_f32_16x16x64_bf16 {vr(acc,4)}, {A}, {B}, v{vIdx}")
    def mf(D, A, B, C, op="v_mfma_f32_16x16x32_bf16"): g(f"{op} {vr(D,4)}, {A}, {B}, {C}")
    m16 = "v_mfma_f32_16x16x16_bf16"
    def wb(mat, t):
        r, f = t >> 2, t & 3
        if (mat, r) in slot: return vr(KX + 8*f, 8)
        return wfrag(mat, r, f)
    ACC = {"q": AQ, "k": AK, "v": AV}
    def gm(mat, t, *fill):
        smf(ACC[mat], vr(M(t),4), wb(mat, t))
        stamp(f"{mat}{t}", 9)
        for x in fill: g(x)
    def dpp(dst, src): return f"v_mov_b32_dpp v{dst}, v{src} row_ror:8 row_mask:0xf bank_mask:0xf"
    def mrd(t): return f"ds_read_b128 {vr(M(t),4)}, v{MA[t>>2]} offset:{L_MB+512*(t&3)}"
    def wkr(n): return f"ds_read_b128 {vr(KX+4*n,4)}, v{vWo} offset:{lds_w('k',3,n>>1,n&1)}"
    def kxr(n): return f"ds_read_b128 {vr(KX+4*n,4)}, v{vKrd} offset:{L_KB+1024*n}"
    def xr(b, x, dst=None, ad=None): return f"ds_read_b64_tr_b16 {vr((X+4*b if dst is None else dst)+2*x,2)}, v{vXrd if ad is None else ad} offset:{L_XB+(32*b+16*x)*8}"
    def wor(r, n): return f"ds_read_b128 {vr(WOL[(r, n>>1)]+4*(n&1),4)}, v{vW2} offset:{lds_w('o',r,n>>1,n&1)-65536}"
    def cvt(d, a_, b_): return f"v_cvt_pk_bf16_f32 v{d}, v{a_}, v{b_}"
    PB = (M(12), M(14))
    def issue2(regs, so):
        g(f"buffer_load_dwordx4 {vr(regs[0],4)}, v{vQ}, {W}, s{so} offen sc1")
        g(f"buffer_load_dwordx4 {vr(regs[1],4)}, v{vQ}, {W}, s{so} offen offset:1024 sc1")
    def check2(regs, mm=False):
        r0, r1 = regs
        g("s_waitcnt vmcnt(3)")
        if mm:
            mf(DD, vr(SEL,4), vr(r0,4), 0)
            g(f"v_bitop3_b32 v{CK}, v{r0}, v{r0+2}, v{CK+2} bitop3:0x7e")
            g("s_waitcnt vmcnt(2)")
            mf(DD, vr(SEL,4), vr(r1,4), vr(DD,4))
            g(f"v_bitop3_b32 v{CK+1}, v{r1}, v{r1+2}, v{CK+2} bitop3:0x7e")
            g(f"v_bitop3_b32 v{CK}, v{CK}, v{CK+1}, 1 bitop3:0xa8")
            g(f"v_cmp_ne_u32 vcc, 0, v{CK}")
            return
        g(f"v_max3_u32 v{CK}, v{r0}, v{r0+1}, v{r0+2}")
        g(f"v_max_u32 v{CK}, v{CK}, v{r0+3}")
        g("s_waitcnt vmcnt(2) lgkmcnt(0)")
        g(f"v_max3_u32 v{CK}, v{CK}, v{r1}, v{r1+1}")
        g(f"v_max3_u32 v{CK}, v{CK}, v{r1+2}, v{r1+3}")
        g(f"v_cmp_eq_u32 vcc, -1, v{CK}")
    g("s_branch R_loop")
    g(".p2align 4")
    g("R_top:")
    g("s_barrier")
    if o.stamps and "B0" in o.sel: g(f"s_memtime s[{sSt+24}:{sSt+25}]")
    sc = step_scalars()
    for x in sc[:o.pdelay]: g(x)
    issue2((M(0), M(2)), sMr)
    for x in sc[o.pdelay:]: g(x)
    issue2(PB, sMr)
    for x in pf_addr(): g(x)
    g("R_poll:")
    check2((M(0), M(2)))
    g("s_cbranch_vccnz R_pollB")
    g("R_pollok:")
    if o.stamps:
        g(f"{'s_memrealtime' if o.rt else 's_memtime'} s[{sSt+26}:{sSt+27}]")
        g(f"""s_waitcnt lgkmcnt(0)
        s_lshl_b32 s{sT0}, s{sH}, 2
        s_add_u32 s{sT0}, s{sT0}, s{sW}
        s_lshl_b32 s{sT0}, s{sT0}, 6
        s_add_u32 s{sT0}, s{sT0}, s{sStep}
        s_lshl_b32 s{sT0}, s{sT0}, 6
        s_add_u32 s{sT0}, s{sT0}, {WS_DBG + 1024*1024}""")
        for n in range(14): g(f"v_writelane_b32 v{DD}, s{sSt+2*n}, {n}")
        g(f"v_writelane_b32 v{DD}, s{sFailA}, 14")
        g(f"v_writelane_b32 v{DD}, s{sBudget}, 15")
        g(f"v_lshrrev_b32 v{DD+1}, 2, v{vKrd}")
        g(f"v_and_b32 v{DD+1}, 0xff, v{DD+1}")
        g("s_mov_b64 exec, 0xffff")
        g(f"buffer_store_dword v{DD}, v{DD+1}, {W}, s{sT0} offen")
        g("s_mov_b64 exec, -1")
    g("R_loop:")
    stamp("start")
    far = [f"buffer_load_dwordx4 v{vQ}, {W}, s{sKn} offen sc1 lds", f"buffer_load_dwordx4 v{vQ}, {W}, s{sKn} offen offset:1024 sc1 lds",
           f"buffer_load_dword v{vJ}, v{MA[3]+1}, {W}, s{sVn} offen sc1"]
    exs = "" if o.noexp else " sc1"
    gm("q", 0, f"ds_write_b128 v{vQ}, {vr(M(0),4)} offset:{L_MB}")
    gm("k", 0, f"ds_write_b128 v{vQ}, {vr(M(2),4)} offset:{L_MB+1024}")
    gm("q", 2, f"buffer_load_dwordx4 {vr(V,4)}, v{vQ}, {W}, s{sVc} offen sc1", dpp(M(1), M(0)))
    gm("k", 2, dpp(M(1)+1, M(0)+1), dpp(M(1)+2, M(0)+2))
    gm("v", 0, f"buffer_load_dwordx4 {vr(V+4,4)}, v{vQ}, {W}, s{sVc} offen offset:1024 sc1", dpp(M(1)+3, M(0)+3))
    gm("v", 2, dpp(M(3), M(2)), dpp(M(3)+1, M(2)+1))
    gm("q", 1, "s_waitcnt lgkmcnt(0)", "s_barrier")
    stamp("B1", 2)
    g(mrd(4))
    gm("k", 1, mrd(5), dpp(M(3)+2, M(2)+2), dpp(M(3)+3, M(2)+3))
    gm("v", 1, "s_mov_b64 exec, 0xfffff", far[2], "s_mov_b64 exec, -1")
    gm("q", 3, mrd(6), mrd(7))
    gm("k", 3, mrd(8), far[0])
    gm("v", 3, mrd(9), "s_waitcnt lgkmcnt(5)")
    seq = []
    for m_ in range(4): seq += [("q", 4+3*m_), ("q", 5+3*m_), ("q", 6+3*m_), ("k", 4+m_)]
    seq += [("k", t) for t in range(8, 16)]
    ds = [mrd(t) for t in range(10, 16)] + [wkr(n) for n in range(8)]
    issued = 6
    extra = {
      1: ["s_waitcnt vmcnt(4)"], 2: [far[1]], 4: [f"buffer_store_dword v{MA[3]+3}, v{vMst}, {W}, s{sMz} offen"],
      14: ["s_mov_b64 exec, 0x100000", f"buffer_store_dword v{vJ}, off, {W}, s{sFlE} sc1", "s_mov_b64 exec, -1"],
      16: [f"v_mul_f32 v{AQ}, s{sC}, v{AQ}"], 17: [f"v_mul_f32 v{AQ+1}, s{sC}, v{AQ+1}"],
      18: [f"v_mul_f32 v{AQ+2}, s{sC}, v{AQ+2}"], 19: ["s_waitcnt lgkmcnt(0)", f"v_mul_f32 v{AQ+3}, s{sC}, v{AQ+3}"],
      20: [cvt(AQ, AQ, AQ+1)], 21: [kxr(0), cvt(AQ+1, AQ+2, AQ+3)],
      22: [f"ds_write_b64 v{vXwr}, {vr(AQ,2)} offset:{L_XB}"], 23: [kxr(1), f"v_mov_b32 v{AQ}, v{vMask}"],
    }
    for n, (mat, t) in enumerate(seq):
        fill = []
        nxt = seq[n+1] if n+1 < len(seq) else None
        if nxt and nxt[0] == "q":
            wv = " vmcnt(4)" if n == 1 else ""
            fill.append(f"s_waitcnt lgkmcnt({issued - (nxt[1] - 3)}){wv}")
        if n < len(ds): fill.append(ds[n]); issued += 1
        fill += [x for x in extra.get(n, []) if n != 1]
        gm(mat, t, *fill)
    stamp("kdone", 2)
    E = PX
    gm("v", 5, f"v_mov_b32 v{AQ+1}, v{vMask}", f"v_mov_b64 {vr(AQ+2,2)}, {vr(AQ,2)}", cvt(E, AK, AK+1), cvt(E+1, AK+2, AK+3))
    gm("v", 4, f"ds_write_b64 v{vXwr}, {vr(E,2)} offset:{L_XB+2*XPL}")
    gm("v", 6, f"v_add_u32 v{vW2}, 0x10000, v{vWo}")
    gm("v", 10, kxr(2), f"v_mov_b32 v{ONES}, 0x3f803f80")
    gm("v", 11, kxr(3), f"v_mov_b32 v{ONES+1}, 0x3f803f80")
    gm("v", 12, f"buffer_store_dwordx2 {vr(E,2)}, v{vXwr}, {W}, s{sEx} offen{exs}")
    gm("v", 13, "s_waitcnt lgkmcnt(2)", "s_barrier")
    stamp("B2")
    g(xr(0,0)); g(xr(0,1))
    gm("v", 14, xr(1,0), xr(1,1))
    gm("v", 15, xr(2,0), xr(2,1))
    gm("v", 7, xr(3,0), xr(3,1))
    gm("v", 8, kxr(4), f"v_mov_b64 {vr(ONES+2,2)}, {vr(ONES,2)}")
    gm("v", 9, kxr(5), "s_waitcnt lgkmcnt(6)")
    xb = lambda b: vr(X+4*b, 4)
    SM, SX0 = AQ, AK
    def ex(r): return f"v_exp_f32 v{r}, v{r}"
    sfill = {
      0: [kxr(6), f"v_mov_b64 {vr(VV,2)}, 0"],
      1: ["s_waitcnt lgkmcnt(3)", kxr(7), cvt(VV+2, AV, AV+1)],
      2: [wor(2, 0), cvt(VV+3, AV+2, AV+3)],
      3: [wor(2, 1), f"v_xor_b32 v{vKrd}, 8192, v{vKrd}"],
      4: [f"buffer_store_dwordx2 {vr(VV+2,2)}, v{vXwr}, {W}, s{sEx} offen offset:{2*XPL}{exs}"],
      5: [ex(SM)], 6: [ex(SM+1)], 7: ["s_waitcnt lgkmcnt(2)", ex(SM+2)], 8: [ex(SM+3)],
      9: [ex(SX0)], 10: [ex(SX0+1)], 11: [ex(SX0+2), ex(SX0+3)],
    }
    n = 0
    for D, A_, C0 in ((SM, xb, None), (SX0, lambda b: vr(KX+4*b,4), "0"), (SX1, lambda b: vr(KX+16+4*b,4), "0")):
        for b in range(4):
            mf(D, A_(b), xb(b), C0 if (b == 0 and C0) else vr(D,4))
            stamp(f"S{n}", 9)
            for x in sfill.get(n, []): g(x)
            n += 1
    stamp("Sissued", 3)
    g(cvt(PM, SM, SM+1)); g(cvt(PM+1, SM+2, SM+3))
    g(f"v_permlane32_swap_b32 v{VV}, v{VV+2}")
    g(f"v_permlane32_swap_b32 v{VV+1}, v{VV+3}")
    mf(LL, vr(ONES,2), vr(PM,2), 0, m16); g(ex(SX1))
    mf(O0, vr(VV,2), vr(PM,2), 0, m16); g(ex(SX1+1))
    mf(O1, vr(VV+2,2), vr(PM,2), 0, m16); g(ex(SX1+2))
    g(ex(SX1+3))
    g(cvt(PX, SX0, SX0+1)); g(cvt(PX+1, SX0+2, SX0+3)); g(cvt(PX+2, SX1, SX1+1)); g(cvt(PX+3, SX1+2, SX1+3))
    g(f"s_waitcnt vmcnt(7)")
    g(f"v_mov_b64 {vr(AQ,2)}, 0")
    mf(LL, vr(ONES,4), vr(PX,4), vr(LL,4)); g(wor(3, 0)); g(wor(3, 1))
    mf(O0, vr(V,4), vr(PX,4), vr(O0,4)); g(wor(2, 2)); g(wor(2, 3))
    mf(O1, vr(V+4,4), vr(PX,4), vr(O1,4))
    stamp("PV", 3)
    g(f"v_rcp_f32 v{RC}, v{LL}")
    g(f"v_mov_b64 {vr(AQ+2,2)}, 0")
    g(f"v_mul_f32 v{O0}, v{RC}, v{O0}")
    g(f"v_mov_b32_dpp v{RC}, v{RC} row_ror:8 row_mask:0xf bank_mask:0xc")
    for k in range(1, 4): g(f"v_mul_f32 v{O0+k}, v{RC}, v{O0+k}")
    for k in range(4): g(f"v_mul_f32_dpp v{O0+k}, v{O1+k}, v{RC} row_ror:8 row_mask:0xf bank_mask:0xc")
    g(cvt(O0, O0, O0+1)); g(cvt(O0+1, O0+2, O0+3))
    g(f"ds_write_b64 v{vOwr}, {vr(O0,2)} offset:{L_OB}")
    stamp("owr")
    OA = [AQ, AK, SX1, AV]
    OF = [O0, O1, LL, PX]
    g(f"v_subrev_u32 v{RC}, {(127-24) << 23}, v{RC}")
    g(f"v_cmp_le_u32 vcc, s{sRange}, v{RC}")
    def post_owr():
        g(dpp(O0+2, O0)); g(dpp(O0+3, O0+1))
        g(f"v_add_u32 v{OF[1]}, s{sO1}, v{vMrd}")
        g(f"v_add_u32 v{OF[2]}, s{sO2}, v{vMrd}")
        g(f"v_add_u32 v{OF[3]}, s{sO3}, v{vMrd}")
        g(f"v_mov_b64 {vr(AK,2)}, 0"); g(f"v_mov_b64 {vr(AK+2,2)}, 0")
        g(f"v_mov_b64 {vr(SX1,2)}, 0"); g(f"v_mov_b64 {vr(SX1+2,2)}, 0"); g(f"v_mov_b64 {vr(AV,2)}, 0"); g(f"v_mov_b64 {vr(AV+2,2)}, 0")
    post_owr()
    g("s_cbranch_vccnz R_slow")
    g("R_slowret:")
    smf(OA[0], vr(O0,4), wfrag("o",0,0))
    g("s_waitcnt lgkmcnt(0)")
    g("s_barrier")
    stamp("B3", 2)
    for r in range(1, 4): g(f"ds_read_b128 {vr(OF[r],4)}, v{OF[r]} offset:{L_OB}")
    smf(OA[1], vr(O0,4), wfrag("o",0,1))
    smf(OA[2], vr(O0,4), wfrag("o",0,2)); g(wor(3, 2))
    smf(OA[3], vr(O0,4), wfrag("o",0,3)); g(wor(3, 3)); g("s_waitcnt lgkmcnt(4)")
    def wo(r, u): return wfrag("o",1,u) if r == 1 else vr(WOL[(r, u)], 8)
    def wm(r, u, *fill):
        smf(OA[u], vr(OF[r],4), wo(r, u))
        stamp(f"w{r}{u}", 9)
        for x in fill: g(x)
    ustep = 2048 if o.uspread else 2*o.rs
    def pst(u): return f"buffer_store_dwordx2 {vr(OA[u],2)}, v{vPst}, {W}, s{sPw} offen"
    def pcv(u): return [cvt(OA[u], OA[u], OA[u]+1), cvt(OA[u]+1, OA[u]+2, OA[u]+3), f"v_and_or_b32 v{OA[u]}, v{OA[u]}, -2, s{sPh}"]
    inc = f"s_add_u32 s{sPw}, s{sPw}, {ustep}"
    wm(1, 0, wor(2, 4), "s_waitcnt lgkmcnt(4)")
    wm(2, 0, wor(2, 5), "s_waitcnt lgkmcnt(4)")
    wm(3, 0, wor(3, 4), wor(3, 5))
    wm(1, 1, wor(2, 6), wor(2, 7), "s_waitcnt lgkmcnt(6)", *pcv(0))
    wm(2, 1, pst(0))
    wm(3, 1, inc, wor(3, 6), wor(3, 7))
    wm(1, 2, "s_waitcnt lgkmcnt(4)")
    wm(2, 2, *pcv(1))
    wm(3, 2, pst(1))
    wm(1, 3, "s_waitcnt lgkmcnt(0)", inc)
    wm(2, 3, *pcv(2))
    wm(3, 3, pst(2), inc, f"s_add_u32 s{sStep}, s{sStep}, 1", f"s_and_b32 s{sT0}, s{sStep}, 3", f"s_lshl_b32 s{sT0}, s{sT0}, 13")
    g(f"s_add_u32 s{sMr}, s{sT0}, {WS_M}")
    g(f"s_add_u32 s{sMw}, s{sT0}, s{sMoff}")
    for x in pcv(3): g(x)
    g(pst(3))
    def kexp():
        return [f"s_lshl_b32 s{sT0}, s{sW}, 8", f"v_add_u32 v{KE+2}, s{sT0}, v{vXrd}", xr(0, 0, KE, KE+2), xr(0, 1, KE, KE+2)]
    stamp("pst")
    iw = idle_work()
    pre = [f"v_mov_b32 v{DD}, 0x3f80", f"v_cndmask_b32 v{DD}, v{DD}, 1.0, s[{sMaskOdd}:{sMaskOdd+1}]"]
    pre += [f"v_cndmask_b32 v{SEL+d}, 0, v{DD}, s[{sMaskD+2*d}:{sMaskD+2*d+1}]" for d in range(4)]
    pre += [f"v_lshrrev_b32 v{CK+2}, 6, v{vKrd}", f"v_xnor_b32 v{CK+2}, s{sStep}, v{CK+2}"]
    pre += iw[8:] + addr_work() + iw[:8]
    for x in pre[:o.rdelay]: g(x)
    if o.rwait >= 0: g(f"s_waitcnt vmcnt({o.rwait})")
    stamp("rgo")
    issue2(RA, sRoff)
    for x in pre[o.rdelay:]: g(x)
    if o.rgap: g(f"s_nop {o.rgap-1}")
    issue2(RB, sRoff)
    g(f"""s_add_u32 s{sReq}, s{sStep}, 3
    s_lshr_b32 s{sReq}, s{sReq}, 1
    s_min_u32 s{sReq}, s{sReq}, 32
    s_waitcnt vmcnt(8)
    v_cmp_gt_u32 vcc, s{sReq}, v{vJ}
    s_and_b32 s{sT0}, vcc_lo, 0xf0000
    s_cbranch_scc1 R_kvwait""")
    g("R_red:")
    check2(RA, True)
    g("s_cbranch_vccnz R_redB")
    g("R_redok:")
    stamp("rok", 9)
    for sh in (8, 4):
        for k in range(2): g(f"v_add_f32_dpp v{DD+k}, v{DD+k}, v{DD+k} row_ror:{sh} row_mask:0xf bank_mask:0xf")
    g(cvt(DD, DD, DD+1))
    g(f"buffer_store_dword v{DD}, v{vMst}, {W}, s{sMw} offen")
    stamp("pub")
    g("s_branch R_top")
    g("R_redB:")
    issue2(RA, sRoff)
    g(f"s_add_u32 s{sFailA}, s{sFailA}, 1")
    check2(RB, True)
    g("s_cbranch_vccz R_redok")
    issue2(RB, sRoff)
    g(f"s_add_u32 s{sFailA}, s{sFailA}, 1")
    g(f"s_cmp_lt_u32 s{sFailA}, 0x40000")
    g("s_cbranch_scc1 R_red")
    g("s_endpgm")
    g("R_kvwait:")
    g(f"v_bfe_u32 v{CK}, v{vKrd}, 4, 2\nv_lshlrev_b32 v{CK}, 2, v{CK}\nv_mov_b32 v{CK+1}, s{sReq}")
    roles.spin(g, "R_kv", CK, f"s{sFlB}", CK+1, CK+3)
    g("s_branch R_red")
    g("R_pollB:")
    issue2((M(0), M(2)), sMr)
    g(f"s_sub_u32 s{sBudget}, s{sBudget}, 1")
    check2(PB)
    g("s_cbranch_vccnz R_pollfail")
    for k in (0, 2): g(f"v_mov_b64 {vr(M(0)+k,2)}, {vr(PB[0]+k,2)}")
    for k in (0, 2): g(f"v_mov_b64 {vr(M(2)+k,2)}, {vr(PB[1]+k,2)}")
    g(f"s_branch R_pollok")
    g("R_pollfail:")
    issue2(PB, sMr)
    g(f"s_sub_u32 s{sBudget}, s{sBudget}, 1")
    g(f"s_cmp_gt_i32 s{sBudget}, 0")
    g("s_cbranch_scc1 R_poll")
    g("s_endpgm")
    if o.stamps:
        while len(o.stamp_names) < 13: o.stamp_names.append("-")
        if "B0" in o.sel: o.stamp_names[12] = "B0"
        o.stamp_names.append("Mok")
    g("R_slow:")
    g(f"s_cmp_eq_u32 s{sStep}, {o.nsteps-1}")
    g("s_cbranch_scc1 R_done")
    g("s_waitcnt lgkmcnt(0)")
    g(f"v_xor_b32 v{vKrd}, 8192, v{vKrd}")
    for n in range(8): g(kxr(n))
    g(f"v_xor_b32 v{vKrd}, 8192, v{vKrd}")
    g("s_waitcnt lgkmcnt(0)")
    for b in range(4): g(xr(b, 0)); g(xr(b, 1))
    for k in range(4): g(f"v_mov_b32 v{SM+k}, v{vMask}")
    g("s_waitcnt lgkmcnt(0)")
    for D, A_, C0 in ((SX0, lambda b: vr(KX+4*b,4), "0"), (SX1, lambda b: vr(KX+16+4*b,4), "0"), (SM, xb, None)):
        for b in range(4): mf(D, A_(b), xb(b), C0 if (b == 0 and C0) else vr(D,4))
    g(wor(2, 2)); g(wor(2, 3))
    sregs = [SX0+j for j in range(4)] + [SX1+j for j in range(4)] + [SM+j for j in range(4)]
    mx, mt = O0, O0+1
    g(f"v_max3_f32 v{mx}, v{sregs[0]}, v{sregs[1]}, v{sregs[2]}")
    for k in range(3, 11, 2): g(f"v_max3_f32 v{mx}, v{mx}, v{sregs[k]}, v{sregs[k+1]}")
    g(f"v_max_f32 v{mx}, v{mx}, v{sregs[11]}")
    for sw in ("v_permlane32_swap_b32", "v_permlane16_swap_b32"):
        g(f"v_mov_b32 v{mt}, v{mx}")
        g(f"{sw} v{mx}, v{mt}")
        g(f"v_max_f32 v{mx}, v{mx}, v{mt}")
    for s_ in sregs: g(f"v_sub_f32 v{s_}, v{s_}, v{mx}")
    for s_ in sregs: g(ex(s_))
    for k in range(4): g(cvt(PX+k, sregs[2*k], sregs[2*k+1]))
    for k in range(2): g(cvt(PM+k, sregs[8+2*k], sregs[9+2*k]))
    mf(LL, vr(ONES,4), vr(PX,4), 0); mf(O0, vr(V,4), vr(PX,4), 0); mf(O1, vr(V+4,4), vr(PX,4), 0)
    mf(LL, vr(ONES,2), vr(PM,2), vr(LL,4), m16); mf(O0, vr(VV,2), vr(PM,2), vr(O0,4), m16); mf(O1, vr(VV+2,2), vr(PM,2), vr(O1,4), m16)
    g(f"v_rcp_f32 v{RC}, v{LL}")
    g(f"v_mov_b32_dpp v{RC}, v{RC} row_ror:8 row_mask:0xf bank_mask:0xc")
    for k in range(4): g(f"v_mul_f32 v{O0+k}, v{RC}, v{O0+k}")
    for k in range(4): g(f"v_mul_f32_dpp v{O0+k}, v{O1+k}, v{RC} row_ror:8 row_mask:0xf bank_mask:0xc")
    g(cvt(O0, O0, O0+1)); g(cvt(O0+1, O0+2, O0+3))
    g(f"ds_write_b64 v{vOwr}, {vr(O0,2)} offset:{L_OB}")
    post_owr()
    for k in range(0, 4, 2): g(f"v_mov_b64 {vr(AQ+k,2)}, 0")
    g("s_waitcnt lgkmcnt(0)")
    g("s_branch R_slowret")
    g("R_done:")
    g("s_waitcnt vmcnt(0) lgkmcnt(0)")
    roles.set_flag(g, sFlE, o.nsteps, vJ)

def gen(o):
    g = G()
    R = roles
    g(f"s_cmp_ge_u32 s2, 256")
    g("s_cbranch_scc0 K_go")
    g("s_endpgm")
    g("K_go:")
    if o.prof or o.ronly:
        g("s_memrealtime s[96:97]")
        g("s_memtime s[100:101]")
    srd(g, S_WS, 96, WS_SIZE); srd(g, S_DBG, 88, 256)
    g(f"""v_lshrrev_b32 v1, 6, v0
    s_mov_b32 s{sBudget}, 0x40000
    v_readfirstlane_b32 s{sW}, v1
    s_getreg_b32 s3, hwreg(HW_REG_XCC_ID)
    s_and_b32 s3, s3, 7
    s_mul_i32 s20, s3, 24
    s_add_u32 s20, s20, 56
    s_cmp_eq_u32 s3, 0
    s_cselect_b32 s20, 0, s20
    v_mov_b32 v2, 1
    v_mov_b32 v3, 0
    s_cmp_eq_u32 s{sW}, 0
    s_waitcnt lgkmcnt(0)
    s_cbranch_scc0 K_tick
    s_mov_b64 exec, 1
    buffer_atomic_add v2, off, s[{S_DBG}:{S_DBG+3}], s20 sc0
    s_waitcnt vmcnt(0)
    ds_write_b32 v3, v2
    s_waitcnt lgkmcnt(0)
    s_mov_b64 exec, -1
    K_tick:
    s_barrier
    ds_read_b32 v2, v3
    s_waitcnt lgkmcnt(0)
    v_readfirstlane_b32 s{sH}, v2
    s_cmp_lt_u32 s{sH}, 32
    s_cbranch_scc1 K_role
    s_endpgm
    K_role:""")
    if o.prof == 2:
        g(f"""s_lshl_b32 s20, s3, 5
        s_add_u32 s20, s20, s{sH}
        s_mov_b32 s97, 228
        s_cmp_eq_u32 s20, 159
        s_cselect_b32 s97, 36, s97
        s_cmp_eq_u32 s20, 0
        s_cselect_b32 s97, 8, s97
        s_cmp_eq_u32 s{sW}, 0
        s_cselect_b32 s97, s97, 228
        v_mov_b32 v254, s96
        s_cmp_lt_u32 s97, 64
        s_cselect_b64 exec, 1, 0
        buffer_store_dword v254, off, s[{S_DBG}:{S_DBG+3}], s97 sc1
        s_mov_b64 exec, -1""")
    elif o.prof:
        g(f"""s_lshl_b32 s20, s3, 5
        s_add_u32 s20, s20, s{sH}
        s_lshl_b32 s20, s20, 5
        v_mov_b32 v254, s96
        s_add_u32 s97, s20, {WS_DBG}
        s_mov_b64 exec, 1
        buffer_store_dword v254, off, {W}, s97
        s_mov_b64 exec, -1""")
    g(f"""s_cmp_eq_u32 s3, 0
    s_cbranch_scc1 R_entry""")
    if o.ronly:
        g("s_endpgm")
    else:
        g(f"""s_sub_u32 s3, s3, 1
        s_lshl_b32 s3, s3, 5
        s_add_u32 s{R.sK}, s3, s{sH}
        v_and_b32 v{R.vL}, 63, v0""")
        R.gemm_setup(g, o, 80)
        R.gen_gemm(g, o)
        g(f"""s_cmp_eq_u32 s{R.sPhase}, 3
        s_cbranch_scc0 W_next
        s_endpgm
        W_next:
        s_cmp_ge_u32 s{R.sK}, 192
        s_cbranch_scc1 FA_entry""")
        R.gen_att(g, o)
        g(f"s_cmp_ge_u32 s{R.sK}, 128\ns_cbranch_scc1 W_a3")
        R.gen_fg(g, o)
        R.gen_fa(g, o)
    gen_R(g, o)
    R.tstamp(g, o, 6)
    if o.ronly:
        g(f"""s_memrealtime s[98:99]
        s_memtime s[94:95]
        s_waitcnt lgkmcnt(0)
        s_sub_u32 s98, s98, s96
        s_sub_u32 s94, s94, s100
        v_mov_b32 v3, s94
        v_mov_b32 v1, s98
        v_mov_b32 v2, 0
        s_lshl_b32 s20, s{sH}, 2
        s_add_u32 s20, s20, {WS_DBG + 1000*1024}
        buffer_store_dword v1, v2, s[{S_WS}:{S_WS+3}], s20 offen
        buffer_store_dword v3, v2, s[{S_WS}:{S_WS+3}], s20 offen offset:128
        s_waitcnt vmcnt(0)""")
    g("s_endpgm")
    body = g.text()
    if o.stamps: body = ("; RT\n" if o.rt else "") + "; STAMPS " + " ".join(o.stamp_names) + "\n" + body
    head = open("cdna_kernels/" + NAME + ".s.ref").read().split("; Override")[0]
    return (head + f"; @launch grid=(256,1,1) block=(256,1,1) lds={LDS_BYTES}\n"
      f'.amdgcn_target "amdgcn-amd-amdhsa--gfx950"\n.text\n.globl {NAME}_kernel\n.p2align 8\n.type {NAME}_kernel,@function\n{NAME}_kernel:\n'
      + body +
      f'.section .rodata,"a"\n.p2align 6\n.amdhsa_kernel {NAME}_kernel\n  .amdhsa_next_free_vgpr 512\n  .amdhsa_next_free_sgpr 102\n  .amdhsa_accum_offset 256\n'
      '  .amdhsa_group_segment_fixed_size 0\n  .amdhsa_kernarg_size 104\n  .amdhsa_user_sgpr_count 2\n  .amdhsa_user_sgpr_kernarg_segment_ptr 1\n'
      '  .amdhsa_system_sgpr_workgroup_id_x 1\n  .amdhsa_float_denorm_mode_32 3\n.end_amdhsa_kernel\n')

if __name__ == "__main__":
    o = Opt()
    out = sys.argv[1]
    for a in sys.argv[2:]:
        k, v = a.split("=")
        setattr(o, k, v.split(',') if k == 'sel' else int(v))
    open(out, "w").write(gen(o))
```

```python
from asmgen import *
from cfg import *
sK = 3
sT0, sT1, sT2, sT3 = 20, 21, 22, 23
vL = 255
MF16 = "v_mfma_f32_16x16x32_bf16"
MF32 = "v_mfma_f32_32x32x16_bf16"
def cvt(d, a, b): return f"v_cvt_pk_bf16_f32 v{d}, v{a}, v{b}"

def tstamp(g, o, n, vt=254):
    if not o.prof: return
    if o.prof == 2:
        g(f"""s_memrealtime s[98:99]
        s_waitcnt lgkmcnt(0)
        v_mov_b32 v{vt}, s98
        s_cmp_lt_u32 s97, 64
        s_cselect_b64 exec, 1, 0
        buffer_store_dword v{vt}, off, s[{S_DBG}:{S_DBG+3}], s97 offset:{4*n} sc1
        s_mov_b64 exec, -1""")
        return
    g(f"""s_memrealtime s[98:99]
    s_waitcnt lgkmcnt(0)
    v_mov_b32 v{vt}, s98
    s_mov_b64 exec, 1
    buffer_store_dword v{vt}, off, {W}, s97 offset:{4*n}
    s_mov_b64 exec, -1""")

def spin(g, name, vaddr, soff, vreq, vtmp, srd_=W, one=False, sleep=2):
    if one: g(f"s_cmp_eq_u32 s{sW}, 0\ns_cbranch_scc0 {name}_ok")
    g(f"""{name}:
    buffer_load_dword v{vtmp}, v{vaddr}, {srd_}, {soff} offen sc1
    s_waitcnt vmcnt(0)
    v_cmp_gt_u32 vcc, v{vreq}, v{vtmp}
    s_cbranch_vccz {name}_ok
    s_sleep {sleep}
    s_sub_u32 s{sBudget}, s{sBudget}, 1
    s_cbranch_scc0 {name}
    s_endpgm
    {name}_ok:""")

def wait_init(g, name, t0, one=False, off=4):
    g(f"v_mov_b32 v{t0}, {off}\nv_mov_b32 v{t0+1}, 32")
    spin(g, name, t0, 0, t0+1, t0+2, f"s[{S_DBG}:{S_DBG+3}]", one=one, sleep=8)

def set_flag(g, sflag, val, vt, one=False):
    if one: g(f"s_cmp_eq_u32 s{sW}, 0")
    g(f"""v_mov_b32 v{vt}, {val}
    {"s_cselect_b64 exec, 1, 0" if one else "s_mov_b64 exec, 1"}
    buffer_store_dword v{vt}, off, {W}, s{sflag} sc1
    s_mov_b64 exec, -1""")

S_WT, S_X, S_D = 24, 28, 32
sWoff, sWstr, sXoff, sXstep, sD0, sDdel, sDstep, sScale, sNseg, sFlag, sForm, sPerm, sPhase, sN, sBuf, sD1 = range(36, 52)
sExE = 52
sExF = 54
def gen_gemm(g, o):
    ACC = [0, 16]; XF = 32; NXF = 8; vXs = 64; vXr0 = 72; vXr = 76; vSt = 80; t0, t1, t2 = 81, 82, 83
    i, gg, a, c = 84, 85, 86, 87; vF = 88
    X, WT, D = [f"s[{b}:{b+3}]" for b in (S_X, S_WT, S_D)]
    g("G_entry:")
    g(f"""v_and_b32 v{i}, 15, v{vL}
    v_lshrrev_b32 v{gg}, 4, v{vL}
    v_lshrrev_b32 v{a}, 2, v{i}
    v_and_b32 v{c}, 3, v{vL}""")
    g(f"""s_lshr_b32 s{sT0}, s{sW}, 1
    s_lshl_b32 s{sT0}, s{sT0}, 3
    v_lshlrev_b32 v{t0}, 1, v{gg}
    v_or_b32 v{t0}, s{sT0}, v{t0}
    v_xor_b32 v{t0}, v{t0}, v{i}
    s_lshl_b32 s{sT0}, s{sW}, 2
    v_add_u32 v{t1}, s{sT0}, v{gg}
    v_mul_lo_u32 v{t1}, v{t1}, s{sWstr}
    v_lshl_add_u32 v{t0}, v{t0}, 4, v{t1}
    s_lshl_b32 s{sT1}, s{sW}, 10
    s_add_u32 s{sT1}, s{sT1}, 32768
    s_lshl_b32 s{sT2}, s{sWstr}, 4
    s_mov_b32 s{sT0}, s{sWoff}
    s_waitcnt lgkmcnt(0)
    s_barrier""")
    for m in range(32):
        g(f"""s_mov_b32 m0, s{sT1}
        s_add_u32 s{sT1}, s{sT1}, 4096
        buffer_load_dwordx4 v{t0}, {WT}, s{sT0} offen lds
        s_add_u32 s{sT0}, s{sT0}, s{sT2}""")
    if o.xpf:
        g(f"""s_cmp_eq_u32 s{sPhase}, 1
        s_cbranch_scc0 G_nopf
        s_and_b32 s{sT0}, s{sK}, 31
        s_lshl_b32 s{sT0}, s{sT0}, 2
        s_add_u32 s{sT0}, s{sT0}, s{sW}
        s_lshl_b32 s{sT0}, s{sT0}, 13
        s_cmp_ge_u32 s{sK}, 192
        s_cselect_b32 s{sT1}, 3, 4
        s_lshl_b32 s{sT1}, s{sT1}, 18
        v_lshlrev_b32 v{t1}, 7, v{vL}
        v_add_u32 v{t1}, s{sT0}, v{t1}
        buffer_load_dword v{vF}, v{t1}, {X}, 0 offen
        v_add_u32 v{t1}, s{sT1}, v{t1}
        buffer_load_dword v{vF}, v{t1}, {X}, 0 offen
        v_add_u32 v{t1}, s{sT1}, v{t1}
        buffer_load_dword v{vF}, v{t1}, {X}, 0 offen
        G_nopf:""")
    g(f"s_lshl_b32 s{sT0}, s{sW}, 3")
    for m in range(8):
        g(f"""s_add_u32 s{sT1}, s{sT0}, {m}
        s_and_b32 s{sT2}, s{sT1}, 15
        s_lshl_b32 s{sT1}, s{sT1}, 10
        v_xor_b32 v{vXs+m}, s{sT2}, v{vL}
        v_lshlrev_b32 v{vXs+m}, 4, v{vXs+m}
        v_add_u32 v{vXs+m}, s{sT1}, v{vXs+m}""")
    for tl in range(4):
        g(f"""v_add_u32 v{t1}, {4*tl}, v{gg}
        v_xor_b32 v{t1}, v{t1}, v{i}
        v_lshlrev_b32 v{t1}, 4, v{t1}
        v_lshl_add_u32 v{vXr0+tl}, v{i}, 10, v{t1}
        v_mov_b32 v{vXr+tl}, v{vXr0+tl}""")
    g(f"s_cmp_eq_u32 s{sPhase}, 3\ns_cbranch_scc0 G_nowait")
    g(f"v_lshlrev_b32 v{t0}, 2, v{vL}\nv_mov_b32 v{t1}, 1")
    for k in range(3):
        g(f"s_mov_b32 s{sT0}, {FL_A2 + 256*k}")
        spin(g, f"G_wa{k}", t0, f"s{sT0}", t1, t2, one=True, sleep=16)
    g("s_barrier")
    g("G_nowait:")
    def xdma(m0base):
        L = []
        for m in range(8):
            L.append([f"s_add_u32 m0, s{m0base}, {1024*m}", f"buffer_load_dwordx4 v{vXs+m}, {X}, s{sXoff} offen sc1 lds"])
        return L
    g(f"s_lshl_b32 s{sBuf}, s{sW}, 13")
    for p in xdma(sBuf): g(p[0]); g("s_nop 0"); g(p[1])
    g(f"s_add_u32 s{sXoff}, s{sXoff}, s{sXstep}")
    g(f"""s_cmp_eq_u32 s{sPerm}, 0
    s_cselect_b32 s{sT0}, 3, 4
    s_cselect_b32 s{sT1}, 32, 8
    v_lshlrev_b32 v{t0}, s{sT0}, v{c}
    s_lshl_b32 s{sT2}, s{sW}, 6
    v_add_u32 v{t0}, s{sT2}, v{t0}
    v_add_u32 v{t1}, s{sT1}, v{t0}
    v_and_b32 v{t2}, 1, v{gg}
    v_lshl_add_u32 v{t2}, v{t2}, 2, v{a}
    v_lshlrev_b32 v{t2}, 5, v{t2}
    v_xor_b32 v{t0}, v{t0}, v{t2}
    v_xor_b32 v{t1}, v{t1}, v{t2}
    v_lshl_add_u32 v{t2}, v{gg}, 3, v{a}
    v_lshlrev_b32 v{t2}, 8, v{t2}
    v_add_u32 v{t2}, 32768, v{t2}
    v_add_u32 v{t0}, v{t0}, v{t2}
    v_add_u32 v{t1}, v{t1}, v{t2}
    s_waitcnt vmcnt(8)
    s_barrier""")
    for t in range(16):
        if t == 8: g(f"v_add_u32 v{t0}, 0x10000, v{t0}\nv_add_u32 v{t1}, 0x10000, v{t1}")
        for T in range(2):
            for hh in range(2):
                g(f"ds_read_b64_tr_b16 {vr((T*16+t)*4+2*hh, 2, 'a')}, v{(t0,t1)[T]} offset:{((t&7)*32+4*hh)*256}")
        if t % 2 == 1: g("s_waitcnt lgkmcnt(0)")
    g("s_barrier")
    for rep in range(2):
        if rep: g(f"s_add_u32 s{sXoff}, s{sXoff}, s{sXstep}")
        g(f"s_add_u32 s{sBuf}, s{sBuf}, 32768")
        for p in xdma(sBuf): g(p[0]); g("s_nop 0"); g(p[1])
    wait_init(g, "G_init", t0, one=True)
    g("s_waitcnt vmcnt(0)")
    tstamp(g, o, 1)
    g(f"""s_mov_b32 s{sN}, 0
    s_mov_b64 s[{sExE}:{sExE+1}], 0
    s_cmp_eq_u32 s{sWstr}, 8192
    s_cselect_b64 s[{sExF}:{sExF+1}], 1, 0
    s_cmp_eq_u32 s{sW}, 0
    s_cselect_b64 s[{sExF}:{sExF+1}], s[{sExF}:{sExF+1}], 0
    s_cmp_eq_u32 s{sForm}, 0
    s_cbranch_scc0 G_loopV""")
    def epilogue(form, A):
        L = []
        if form == "T":
            for k in range(16): L.append(f"v_mul_f32 v{A+k}, s{sScale}, v{A+k}")
        for x in range(2):
            for k in range(4): L.append(cvt(A+8*x+k, A+8*x+2*k, A+8*x+2*k+1))
        return L
    def stores(A):
        return [f"buffer_store_dwordx4 {vr(A,4)}, v{vSt}, {D}, s{sD0} offen sc1", f"buffer_store_dwordx4 {vr(A+8,4)}, v{vSt}, {D}, s{sD1} offen sc1"]
    def xrd(f):
        t, aa = f >> 1, f & 1
        return f"ds_read_b128 {vr(XF+4*(f % NXF),4)}, v{vXr+(t&3)} offset:{aa*16384 + (t>>2)*256}"
    for form in ("T", "V"):
        g(f"G_loop{form}:")
        for p in range(2):
            A, B = ACC[p], ACC[1-p]
            g("s_waitcnt vmcnt(20)")
            g("s_barrier")
            LA = 6
            for f in range(LA): g(xrd(f))
            g(f"""s_add_u32 s{sT0}, s{sN}, 3
            s_cmp_lt_u32 s{sT0}, s{sNseg}
            s_cselect_b32 s{sT1}, s{sXstep}, 0
            s_add_u32 s{sXoff}, s{sXoff}, s{sT1}
            s_add_u32 s{sBuf}, s{sBuf}, 32768
            s_and_b32 s{sBuf}, s{sBuf}, 0x1ffff
            s_add_u32 s{sD1}, s{sD0}, s{sDdel}
            s_sub_i32 s{sT2}, s{sN}, 3
            s_max_i32 s{sT2}, s{sT2}, 0
            s_add_u32 s{sN}, s{sN}, 1
            s_and_b32 s{sT3}, s{sN}, 3
            s_lshl_b32 s{sT3}, s{sT3}, 15""")
            val = epilogue(form, B) + [f"v_mov_b32 v{vF}, s{sT2}"]
            nv = len(val)
            st = stores(B); dm = xdma(sBuf)
            second = {}
            f0 = (nv + 1) // 2 + (3 if o.gspread else 1)
            second[f0] = [f"s_mov_b64 exec, s[{sExE}:{sExE+1}]", st[0], "s_mov_b64 exec, -1"]
            second[f0+2] = [f"s_mov_b64 exec, s[{sExE}:{sExE+1}]", st[1], "s_mov_b64 exec, -1"]
            second[f0+4] = [f"s_mov_b64 exec, s[{sExF}:{sExF+1}]", f"buffer_store_dword v{vF}, off, {W}, s{sFlag} sc1", "s_mov_b64 exec, -1"]
            slots = [f for f in range(0, 32, 4)] if o.gspread else [f0+5+m for m in range(8)]
            for m in range(8): second[slots[m]] = [dm[m][0], "s_nop 0", dm[m][1]] + second.get(slots[m], [])
            assert f0 + 13 <= 31
            for f in range(32):
                t, aa = f >> 1, f & 1
                xf = vr(XF+4*(f % NXF), 4)
                g(f"s_waitcnt lgkmcnt({min(LA-1, 31-f)})")
                for T in range(2):
                    wf = vr((T*16+t)*4, 4, "a")
                    acc = A + (8*aa + 4*T if form == "T" else 8*T + 4*aa)
                    C = vr(acc, 4) if t else "0"
                    g(f"{MF16} {vr(acc,4)}, {wf}, {xf}, {C}" if form == "T" else f"{MF16} {vr(acc,4)}, {xf}, {wf}, {C}")
                    if T == 0:
                        if f + LA < 32: g(xrd(f + LA))
                        elif f + LA - 32 < 4: g(f"v_add_u32 v{vXr+f+LA-32}, s{sT3}, v{vXr0+f+LA-32}")
                        if val: g(val.pop(0))
                    else:
                        for x in second.get(f, []): g(x)
                        if val and f not in second: g(val.pop(0))
            g(f"s_and_b32 s{sT0}, s{sDstep}, s{sExE}")
            g(f"s_add_u32 s{sD0}, s{sD0}, s{sT0}")
            g(f"s_mov_b64 s[{sExE}:{sExE+1}], -1")
        g(f"s_cmp_lt_u32 s{sN}, s{sNseg}")
        g(f"s_cbranch_scc1 G_loop{form}")
        g(f"s_add_u32 s{sD1}, s{sD0}, s{sDdel}")
        for x in epilogue(form, ACC[1]) + stores(ACC[1]): g(x)
        if form == "T": g("s_branch G_end")
    g("G_end:")
    g("s_waitcnt vmcnt(0)")
    g("s_barrier")
    set_flag(g, sFlag, f"s{sNseg}", vF, one=True)
    tstamp(g, o, 2)
    return vSt

def gemm_setup(g, o, vSt):
    t0, t1, t2 = 81, 82, 83
    def lane_FL():
        g(f"""v_bfe_u32 v{t0}, v{vL}, 3, 1
        v_lshrrev_b32 v{t1}, 4, v{vL}
        v_and_b32 v{t2}, 7, v{vL}
        v_lshlrev_b32 v{vSt}, 9, v{t0}
        v_lshl_add_u32 v{vSt}, v{t1}, 7, v{vSt}
        v_lshl_add_u32 v{vSt}, v{t2}, 4, v{vSt}""")
    def ws_dst():
        for k in range(4): g(f"s_mov_b32 s{S_D+k}, s{S_WS+k}" if k < 3 else f"s_mov_b32 s{S_D+3}, 0x20000")
    g("W_entry:")
    g(f"""s_mov_b32 s{sPhase}, 1
    s_mov_b32 s{sNseg}, 32
    s_mov_b32 s{sXstep}, 65536
    s_and_b32 s{sT3}, s{sK}, 1
    s_lshl_b32 s{sXoff}, s{sT3}, 15
    s_mov_b32 s{sScale}, 1.0
    s_cmp_ge_u32 s{sK}, 216
    s_cbranch_scc1 FA_entry""")
    ws_dst()
    g(f"s_cmp_ge_u32 s{sK}, 192\ns_cbranch_scc1 W_a1")
    g(f"""s_lshr_b32 s{sT0}, s{sK}, 1
    s_mul_i32 s{sT1}, s{sT0}, 43691
    s_lshr_b32 s{sT1}, s{sT1}, 17
    s_mul_i32 s{sT2}, s{sT1}, 3
    s_sub_u32 s{sT2}, s{sT0}, s{sT2}
    s_lshl_b32 s{sWoff}, s{sT1}, 8
    s_mov_b32 s{sWstr}, 8192
    s_mov_b32 s{sPerm}, 0
    s_mov_b32 s{sDstep}, {2*262144}
    s_lshl_b32 s{sD0}, s{sT2}, 24
    s_lshl_b32 s{sT0}, s{sT1}, 13
    s_add_u32 s{sD0}, s{sD0}, s{sT0}
    s_lshl_b32 s{sT0}, s{sT3}, 18
    s_add_u32 s{sD0}, s{sD0}, s{sT0}
    s_lshl_b32 s{sFlag}, s{sT1}, 7
    s_lshl_b32 s{sT0}, s{sT2}, 3
    s_add_u32 s{sFlag}, s{sFlag}, s{sT0}
    s_lshl_b32 s{sT0}, s{sT3}, 2
    s_add_u32 s{sFlag}, s{sFlag}, s{sT0}
    s_add_u32 s{sFlag}, s{sFlag}, {FL_B}""")
    srd(g, S_X, 24, 2*MB_)
    lane_FL()
    g(f"s_cmp_eq_u32 s{sT2}, 2\ns_cbranch_scc1 W_bv")
    g(f"""s_mov_b32 s{sForm}, 0
    s_mov_b32 s{sDdel}, 4096
    s_lshl_b32 s{sT0}, s{sW}, 10
    s_add_u32 s{sD0}, s{sD0}, s{sT0}
    s_cmp_eq_u32 s{sT2}, 1
    s_cbranch_scc1 W_bk
    s_mov_b32 s{sScale}, {f32(CSCALE)}""")
    srd(g, S_WT, 40, 4*MB_); g("s_branch G_entry")
    g("W_bk:"); srd(g, S_WT, 48, 4*MB_); g("s_branch G_entry")
    g("W_bv:")
    g(f"""s_mov_b32 s{sForm}, 1
    s_mov_b32 s{sDdel}, 1024
    s_lshl_b32 s{sT0}, s{sW}, 11
    s_add_u32 s{sD0}, s{sD0}, s{sT0}""")
    srd(g, S_WT, 56, 4*MB_); g("s_branch G_entry")
    g("W_a1:")
    g(f"""s_sub_u32 s{sT0}, s{sK}, 192
    s_lshl_b32 s{sFlag}, s{sT0}, 2
    s_add_u32 s{sFlag}, s{sFlag}, {FL_A1}
    s_lshr_b32 s{sT0}, s{sT0}, 1
    s_lshl_b32 s{sWoff}, s{sT0}, 8
    s_mov_b32 s{sWstr}, 3072
    s_mov_b32 s{sDstep}, 2048
    s_lshl_b32 s{sD0}, s{sT0}, 19
    s_add_u32 s{sD0}, s{sD0}, {WS_AQ}
    s_lshl_b32 s{sT1}, s{sW}, 17
    s_add_u32 s{sD0}, s{sD0}, s{sT1}
    s_lshl_b32 s{sT1}, s{sT3}, 10
    s_add_u32 s{sD0}, s{sD0}, s{sT1}""")
    srd(g, S_X, 0, 2*MB_); srd(g, S_WT, 8, 512*3072)
    g(f"s_cmp_ge_u32 s{sT0}, 8\ns_cbranch_scc1 W_av")
    g(f"""s_mov_b32 s{sForm}, 0
    s_mov_b32 s{sPerm}, 1
    s_mov_b32 s{sDdel}, 128
    s_cmp_lt_u32 s{sT0}, 4
    s_cselect_b32 s{sScale}, {f32(ASCALE)}, 1.0
    v_lshrrev_b32 v{t0}, 5, v{vL}
    v_lshlrev_b32 v{vSt}, 16, v{t0}
    v_bfe_u32 v{t0}, v{vL}, 4, 1
    v_lshl_add_u32 v{vSt}, v{t0}, 9, v{vSt}
    v_bfe_u32 v{t0}, v{vL}, 3, 1
    v_lshl_add_u32 v{vSt}, v{t0}, 8, v{vSt}
    v_and_b32 v{t0}, 7, v{vL}
    v_lshl_add_u32 v{vSt}, v{t0}, 4, v{vSt}
    s_branch G_entry
    W_av:
    s_mov_b32 s{sForm}, 1
    s_mov_b32 s{sPerm}, 0
    s_mov_b32 s{sDdel}, 65536
    v_lshlrev_b32 v{vSt}, 4, v{vL}
    s_branch G_entry""")
    g("W_a3:")
    g(f"""s_mov_b32 s{sPhase}, 3
    s_mov_b32 s{sNseg}, 4
    s_mov_b32 s{sXstep}, 32768
    s_sub_u32 s{sT0}, s{sK}, 128
    s_and_b32 s{sT1}, s{sT0}, 3
    s_lshr_b32 s{sT0}, s{sT0}, 2
    s_lshl_b32 s{sXoff}, s{sT0}, 17
    s_add_u32 s{sXoff}, s{sXoff}, {WS_AO}
    s_mov_b32 s{sScale}, 1.0
    s_lshl_b32 s{sWoff}, s{sT1}, 8
    s_mov_b32 s{sWstr}, 1024
    s_mov_b32 s{sForm}, 0
    s_mov_b32 s{sPerm}, 1
    s_mov_b32 s{sDdel}, 32768
    s_mov_b32 s{sDstep}, 65536
    s_lshl_b32 s{sD0}, s{sT0}, 18
    s_add_u32 s{sD0}, s{sD0}, s{sWoff}
    s_lshl_b32 s{sT1}, s{sW}, 6
    s_add_u32 s{sD0}, s{sD0}, s{sT1}
    s_lshl_b32 s{sFlag}, s{sK}, 2
    s_add_u32 s{sFlag}, s{sFlag}, {FL_JUNK}
    v_and_b32 v{t0}, 15, v{vL}
    v_lshrrev_b32 v{t1}, 4, v{vL}
    v_lshlrev_b32 v{vSt}, 11, v{t0}
    v_lshl_add_u32 v{vSt}, v{t1}, 4, v{vSt}""")
    for k in range(4): g(f"s_mov_b32 s{S_X+k}, s{S_WS+k}" if k < 3 else f"s_mov_b32 s{S_X+3}, 0x20000")
    srd(g, S_WT, 16, 512*1024); srd(g, S_D, 80, 4*MB_)
    g("s_branch G_entry")

def gen_att(g, o):
    sHead, sPart, sQ0, sIt, sRetry, sVm = 24, 25, 26, 27, 28, 30
    Q = 0; KF = 12; VF = 20; P = 36; SB = 48; O = 80; C = 128; vK, vV, t0, t1, t2 = 176, 177, 178, 179, 180
    g("AT_entry:")
    g(f"""s_mul_i32 s{sHead}, s{sK}, 10923
    s_lshr_b32 s{sHead}, s{sHead}, 16
    s_mul_i32 s{sT0}, s{sHead}, 6
    s_sub_u32 s{sPart}, s{sK}, s{sT0}
    v_lshlrev_b32 v{t0}, 2, v{vL}
    v_cmp_gt_u32 vcc, 24, v{vL}
    v_cndmask_b32 v{t1}, 0, 32, vcc
    s_mov_b32 s{sT0}, {FL_A1}""")
    spin(g, "AT_w", t0, f"s{sT0}", t1, t2, one=True, sleep=16)
    tstamp(g, o, 3)
    g(f"""v_lshlrev_b32 v{vK}, 4, v{vL}
    s_lshl_b32 s{sT0}, s{sHead}, 16
    s_lshl_b32 s{sT1}, s{sW}, 10
    s_add_u32 s{sT0}, s{sT0}, s{sT1}
    s_add_u32 s{sT2}, s{sT0}, {WS_AK}
    s_add_u32 s{sT3}, s{sT0}, {WS_AV}
    s_barrier""")
    for m in range(16):
        g(f"""s_mov_b32 m0, s{sT1}
        s_nop 0
        buffer_load_dwordx4 v{vK}, {W}, s{sT2} offen sc1 lds
        s_add_u32 m0, s{sT1}, 65536
        s_add_u32 s{sT2}, s{sT2}, 4096
        buffer_load_dwordx4 v{vK}, {W}, s{sT3} offen sc1 lds
        s_add_u32 s{sT3}, s{sT3}, 4096
        s_add_u32 s{sT1}, s{sT1}, 4096""")
    g(f"""s_lshl_b32 s{sT0}, s{sPart}, 2
    s_add_u32 s{sT0}, s{sT0}, s{sW}
    s_mul_i32 s{sT1}, s{sT0}, 3
    s_lshl_b32 s{sT2}, s{sT0}, 1
    s_add_u32 s{sT2}, s{sT2}, 16
    s_cmp_lt_u32 s{sPart}, 4
    s_cselect_b32 s{sQ0}, s{sT1}, s{sT2}
    s_lshl_b32 s{sT0}, s{sHead}, 16
    s_lshl_b32 s{sT1}, s{sQ0}, 10
    s_add_u32 s{sT0}, s{sT0}, s{sT1}
    s_add_u32 s{sT0}, s{sT0}, {WS_AQ}""")
    for q in range(3): g(f"buffer_load_dwordx4 {vr(Q+4*q,4)}, v{vK}, {W}, s{sT0} offen offset:{1024*q} sc1")
    for k in range(16): g(f"v_mov_b32 v{VF+k}, 0x3f803f80")
    for k in range(0, 48, 2): g(f"v_mov_b64 {vr(C+k,2)}, 0")
    g(f"""s_mov_b32 s{sVm}, 0xffff
    s_mov_b32 s{sVm+1}, 0xffff
    s_mov_b32 s{sRetry}, {1 if False else 0}
    s_waitcnt vmcnt(0)
    s_barrier
    s_cmp_lt_u32 s{sPart}, 4
    s_cbranch_scc0 AT2_run""")
    def ex(r): return f"v_exp_f32 v{r}, v{r}"
    def krd(b, off): return f"ds_read_b128 {vr(KF+4*b,4)}, v{vK} offset:{off}"
    def vrd(b, off): return [f"s_mov_b64 exec, s[{sVm}:{sVm+1}]", f"ds_read_b128 {vr(VF+8*b,4)}, v{vV} offset:{off}",
                             f"ds_read_b128 {vr(VF+8*b+4,4)}, v{vV} offset:{off+512}", "s_mov_b64 exec, -1"]
    for NQ in (3, 2):
        N = f"AT{NQ}"
        g(f"{N}_run:")
        g(f"""v_lshlrev_b32 v{vK}, 4, v{vL}
        v_lshrrev_b32 v{t0}, 5, v{vL}
        v_and_b32 v{t1}, 15, v{vL}
        v_lshlrev_b32 v{vV}, 8, v{t0}
        v_lshl_add_u32 v{vV}, v{t1}, 4, v{vV}
        v_add_u32 v{vV}, 0x10000, v{vV}""")
        for k in range(0, 16*NQ, 2): g(f"v_mov_b64 {vr(O+k,2)}, 0")
        for k in range(4, 8, 2): g(f"v_mov_b64 {vr(P+k,2)}, 0")
        g(krd(0, 0))
        for x in vrd(0, 0) + vrd(1, 0): g(x)
        g(f"s_mov_b32 s{sIt}, 0")
        g("s_waitcnt lgkmcnt(0)")
        g(f"{MF32} {vr(SB,16)}, {vr(KF,4)}, {vr(Q,4)}, {vr(C,16)}")
        g(f"{N}_loop:")
        U = 2*NQ
        for u in range(U):
            b, q = divmod(u, NQ)
            S = SB + 16*(u & 1); S2 = SB + 16*((u+1) & 1)
            pb, pq = divmod((u - 1) % U, NQ)
            nb, nq = divmod((u + 1) % U, NQ)
            g(f"{MF32} {vr(O+16*pq,16)}, {vr(VF+8*pb+4,4)}, {vr(P+4,4)}, {vr(O+16*pq,16)}")
            if q == 0:
                g(krd(1-b, 1024*(b+1)))
                for x in vrd(1-b, 1024*(b+1)): g(x)
            for k in range(4): g(ex(S+k))
            if nq == 0: g("s_waitcnt lgkmcnt(0)")
            g(f"{MF32} {vr(S2,16)}, {vr(KF+4*nb,4)}, {vr(Q+4*nq,4)}, {vr(C+16*nq,16)}")
            for k in range(4, 8): g(ex(S+k))
            g(ex(S+8))
            for k in range(4): g(cvt(P+k, S+2*k, S+2*k+1))
            g(ex(S+9)); g(ex(S+10))
            g(f"{MF32} {vr(O+16*q,16)}, {vr(VF+8*b,4)}, {vr(P,4)}, {vr(O+16*q,16)}")
            for k in range(11, 16): g(ex(S+k))
            for k in range(4): g(cvt(P+4+k, S+8+2*k, S+8+2*k+1))
            if u == U - 1:
                g(f"v_add_u32 v{vK}, 2048, v{vK}\nv_add_u32 v{vV}, 2048, v{vV}")
            else: g("s_nop 1")
        g(f"""s_add_u32 s{sIt}, s{sIt}, 1
        s_cmp_lt_u32 s{sIt}, 32
        s_cbranch_scc1 {N}_loop""")
        g(f"{MF32} {vr(O+16*(NQ-1),16)}, {vr(VF+12,4)}, {vr(P+4,4)}, {vr(O+16*(NQ-1),16)}")
        g(f"s_cmp_eq_u32 s{sRetry}, 0\ns_cbranch_scc0 {N}_fin")
        g(f"v_subrev_u32 v{t0}, {(127-30) << 23}, v{O+8}")
        for q in range(1, NQ):
            g(f"v_subrev_u32 v{t1}, {(127-30) << 23}, v{O+16*q+8}\nv_max_u32 v{t0}, v{t0}, v{t1}")
        g(f"v_cmp_le_u32 vcc, {0 if o.force_slow else 90 << 23}, v{t0}")
        g(f"s_cbranch_vccz {N}_fin")
        g(f"s_mov_b32 s{sRetry}, 1\ns_mov_b32 s{sIt}, 0\nv_lshlrev_b32 v{vK}, 4, v{vL}")
        for q in range(NQ): g(f"v_mov_b32 v{O+q}, 0xff800000")
        g(f"{N}_max:")
        g(krd(0, 0)); g(f"v_add_u32 v{vK}, 1024, v{vK}"); g("s_waitcnt lgkmcnt(0)")
        for q in range(NQ):
            g(f"{MF32} {vr(SB,16)}, {vr(KF,4)}, {vr(Q+4*q,4)}, 0")
            for k in range(0, 16, 2): g(f"v_max3_f32 v{O+q}, v{O+q}, v{SB+k}, v{SB+k+1}")
        g(f"s_add_u32 s{sIt}, s{sIt}, 1\ns_cmp_lt_u32 s{sIt}, 64\ns_cbranch_scc1 {N}_max")
        for q in range(NQ):
            g(f"v_mov_b32 v{t0}, v{O+q}\nv_permlane32_swap_b32 v{O+q}, v{t0}\nv_max_f32 v{t0}, v{t0}, v{O+q}")
            for k in range(16): g(f"v_sub_f32 v{C+16*q+k}, 0, v{t0}")
        g(f"s_branch {N}_run")
        g(f"{N}_fin:")
        g(f"""v_bfe_u32 v{t0}, v{vL}, 3, 1
        v_lshlrev_b32 v{t1}, 14, v{t0}
        v_bfe_u32 v{t0}, v{vL}, 4, 1
        v_lshl_add_u32 v{t1}, v{t0}, 13, v{t1}
        v_and_b32 v{t0}, 7, v{vL}
        v_lshl_add_u32 v{t1}, v{t0}, 10, v{t1}
        v_lshrrev_b32 v{t0}, 5, v{vL}
        v_lshl_add_u32 v{t1}, v{t0}, 4, v{t1}
        s_lshl_b32 s{sT0}, s{sQ0}, 15
        s_lshl_b32 s{sT1}, s{sHead}, 5
        s_add_u32 s{sT0}, s{sT0}, s{sT1}
        s_add_u32 s{sT0}, s{sT0}, {WS_AO}""")
        for q in range(NQ):
            A = O + 16*q
            g(f"v_rcp_f32 v{t0}, v{A+8}")
            for k in range(8): g(f"v_mul_f32 v{A+k}, v{t0}, v{A+k}")
            for k in range(4): g(cvt(A+k, A+2*k, A+2*k+1))
            g(f"v_permlane32_swap_b32 v{A}, v{A+2}\nv_permlane32_swap_b32 v{A+1}, v{A+3}")
            g(f"buffer_store_dwordx4 {vr(A,4)}, v{t1}, {W}, s{sT0} offen sc1")
            g(f"s_add_u32 s{sT0}, s{sT0}, 32768")
        if NQ == 3: g("s_branch AT_end")
    g("AT_end:")
    g(f"""s_waitcnt vmcnt(0)
    s_barrier
    s_lshl_b32 s{sT0}, s{sK}, 2
    s_add_u32 s{sT0}, s{sT0}, {FL_A2}""")
    set_flag(g, sT0, 1, t0, one=True)
    tstamp(g, o, 4)

def gen_fa(g, o):
    sS, sBlk, sFl, sOut, sFo, sNn = 24, 25, 26, 27, 28, 29
    Q, K, V, KM, VM = 0, 32, 64, 96, 112
    SX = 128
    S00, S10, S11, SM0, SM1 = SX, SX+4, SX+8, SX+12, SX+16
    PX0, PX1, PM0, PM1 = 148, 152, 156, 158
    L0, L1, ONES, DM, MM, O = 160, 164, 168, 172, 176, 180
    vFL, vFa, vR1, vR2, vEx, vXr, vVm, t0, t1, t2, KR = 200, 201, 202, 203, 204, 205, 206, 207, 208, 209, 212
    M16 = "v_mfma_f32_16x16x16_bf16"
    g("FA_entry:")
    wait_init(g, "FA_init", t0, one=True)
    i, gg = t1, t2
    g(f"""s_sub_u32 s{sH}, s{sK}, 192
    v_and_b32 v{i}, 15, v{vL}
    v_lshrrev_b32 v{gg}, 4, v{vL}
    v_bfe_u32 v{t0}, v{vL}, 3, 1
    v_lshlrev_b32 v{vFL}, 9, v{t0}
    v_lshl_add_u32 v{vFL}, v{gg}, 7, v{vFL}
    v_and_b32 v{t0}, 7, v{vL}
    v_lshl_add_u32 v{vFL}, v{t0}, 4, v{vFL}
    v_lshlrev_b32 v{vFa}, 2, v{i}
    v_lshlrev_b32 v{vEx}, 4, v{vL}
    v_and_b32 v{t0}, 1, v{gg}
    v_mul_u32_u24 v{vVm}, {XPL}, v{t0}
    v_lshl_add_u32 v{vVm}, v{i}, 3, v{vVm}
    v_and_b32 v{t0}, 1, v{vL}
    v_mul_u32_u24 v{vXr}, {XPL}, v{t0}
    v_lshl_add_u32 v{vXr}, v{gg}, 5, v{vXr}
    v_bfe_u32 v{t0}, v{vL}, 2, 2
    v_lshl_add_u32 v{vXr}, v{t0}, 3, v{vXr}
    s_lshl_b32 s{sT0}, s{sW}, 12
    v_add_u32 v{vXr}, s{sT0}, v{vXr}
    v_mov_b32 v{KR}, {NEGBIG}
    v_cmp_lt_u32 vcc, 1, v{gg}
    v_lshlrev_b32 v{t0}, 2, v{gg}""")
    for k in range(4): g(f"v_cndmask_b32 v{MM+k}, 0, v{KR}, vcc")
    for k in range(4):
        g(f"v_cmp_gt_u32 vcc, v{t0}, v{i}\nv_cndmask_b32 v{DM+k}, 0, v{KR}, vcc\nv_add_u32 v{t0}, 1, v{t0}")
        g(f"v_mov_b32 v{ONES+k}, 0x3f803f80")
    g(f"v_mov_b64 {vr(PX0+2,2)}, 0")
    sM1, sM2 = 30, 32
    g(f"""s_and_b32 s{sT0}, s{sW}, 1
    s_lshl_b32 s{sM1}, 0x15, s{sT0}
    s_mov_b32 s{sM1+1}, 0
    s_mov_b64 s[{sM2}:{sM2+1}], 0x100
    s_lshl_b32 s{sFl}, s{sH}, 7
    s_add_u32 s{sFl}, s{sFl}, {FL_B}
    s_lshl_b32 s{sFo}, s{sW}, 7
    s_lshl_b32 s{sT0}, s{sH}, 2
    s_add_u32 s{sFo}, s{sFo}, s{sT0}
    s_add_u32 s{sFo}, s{sFo}, {FL_FA}
    s_mov_b32 s{sS}, s{sW}
    s_mov_b32 s{sNn}, 0
    s_barrier""")
    g("FA_loop:")
    g(f"""s_lshr_b32 s{sT0}, s{sS}, 1
    s_add_u32 s{sT0}, s{sT0}, 1
    v_mov_b32 v{t0}, s{sT0}
    v_cndmask_b32 v{vR1}, 0, v{t0}, s[{sM1}:{sM1+1}]
    s_add_u32 s{sT0}, s{sS}, 1
    v_mov_b32 v{t0}, s{sT0}
    v_cndmask_b32 v{vR2}, 0, v{t0}, s[{sM2}:{sM2+1}]
    s_lshl_b32 s{sBlk}, s{sS}, 18
    s_lshl_b32 s{sT0}, s{sH}, 12
    s_add_u32 s{sOut}, s{sBlk}, s{sT0}
    s_add_u32 s{sBlk}, s{sOut}, s{sT0}
    s_add_u32 s{sOut}, s{sOut}, {WS_OX}""")
    spin(g, "FA_w1", vFa, f"s{sFl}", vR1, t0)
    for base, ws in ((Q, WS_QX), (K, WS_KX), (V, WS_VX)):
        g(f"s_add_u32 s{sT0}, s{sBlk}, {ws}\ns_add_u32 s{sT1}, s{sT0}, 4096")
        for n in range(8): g(f"buffer_load_dwordx4 {vr(base+4*n,4)}, v{vFL}, {W}, s{sT0 if n < 4 else sT1} offen offset:{1024*(n&3)} sc1")
    g("s_waitcnt vmcnt(8)")
    for D, kt, qt, C0 in ((S00, 0, 0, vr(DM,4)), (S10, 0, 1, "0"), (S11, 1, 1, vr(DM,4))):
        for b in range(4): g(f"{MF16} {vr(D,4)}, {vr(K+16*kt+4*b,4)}, {vr(Q+16*qt+4*b,4)}, {C0 if b == 0 else vr(D,4)}")
    spin(g, "FA_w2", vFa, f"s{sFl}", vR2, t0)
    g(f"s_add_u32 s{sT0}, s{sBlk}, {WS_EX}")
    g(f"buffer_load_dwordx4 {vr(KR,4)}, v{vEx}, {W}, s{sT0} offen sc1")
    g(f"buffer_load_dwordx4 {vr(KR+4,4)}, v{vEx}, {W}, s{sT0} offen offset:{XPL} sc1")
    for et in range(8): g(f"buffer_load_dwordx2 {vr(VM+2*et,2)}, v{vVm}, {W}, s{sT0} offen offset:{2*XPL+128*et} sc1")
    g(f"s_lshl_b32 s{sT0}, s{sW}, 12\nv_add_u32 v{t0}, s{sT0}, v{vEx}")
    g("s_waitcnt vmcnt(8)")
    g(f"ds_write_b128 v{t0}, {vr(KR,4)}\nds_write_b128 v{t0}, {vr(KR+4,4)} offset:{XPL}")
    g("s_waitcnt lgkmcnt(0)")
    for b in range(4):
        for x in range(2): g(f"ds_read_b64_tr_b16 {vr(KM+4*b+2*x,2)}, v{vXr} offset:{(32*b+16*x)*8}")
    g("s_waitcnt lgkmcnt(0)")
    for D, qt in ((SM0, 0), (SM1, 1)):
        for b in range(4): g(f"{MF16} {vr(D,4)}, {vr(KM+4*b,4)}, {vr(Q+16*qt+4*b,4)}, {vr(MM,4) if b == 0 else vr(D,4)}")
    for qt, regs in ((0, [S00+k for k in range(4)] + [SM0+k for k in range(4)]), (1, [S10+k for k in range(8)] + [SM1+k for k in range(4)])):
        g(f"v_max3_f32 v{t0}, v{regs[0]}, v{regs[1]}, v{regs[2]}")
        for k in range(3, len(regs)-1, 2): g(f"v_max3_f32 v{t0}, v{t0}, v{regs[k]}, v{regs[k+1]}")
        g(f"v_max_f32 v{t0}, v{t0}, v{regs[-1]}")
        for sw in ("v_permlane32_swap_b32", "v_permlane16_swap_b32"):
            g(f"v_mov_b32 v{t1}, v{t0}\n{sw} v{t0}, v{t1}\nv_max_f32 v{t0}, v{t0}, v{t1}")
        for r in regs: g(f"v_sub_f32 v{r}, v{r}, v{t0}")
        for r in regs: g(f"v_exp_f32 v{r}, v{r}")
        px, pm = (PX0, PM0) if qt == 0 else (PX1, PM1)
        for k in range((len(regs) - 4) // 2): g(cvt(px+k, regs[2*k], regs[2*k+1]))
        for k in range(2): g(cvt(pm+k, regs[-4+2*k], regs[-3+2*k]))
        L = (L0, L1)[qt]
        g(f"{MF16} {vr(L,4)}, {vr(ONES,4)}, {vr(px,4)}, 0")
        g(f"{M16} {vr(L,4)}, {vr(ONES,2)}, {vr(pm,2)}, {vr(L,4)}")
    g("s_waitcnt vmcnt(0)")
    g(f"v_rcp_f32 v{L0}, v{L0}\nv_rcp_f32 v{L1}, v{L1}")
    units = [(qt, b) for qt in range(2) for b in range(4)]
    def pv(n):
        qt, b = units[n]; A = O + 8*(n & 1)
        px, pm = (PX0, PM0) if qt == 0 else (PX1, PM1)
        for T in range(2): g(f"{MF16} {vr(A+4*T,4)}, {vr(V+4*(2*b+T),4)}, {vr(px,4)}, 0")
        for T in range(2): g(f"{M16} {vr(A+4*T,4)}, {vr(VM+2*(2*b+T),2)}, {vr(pm,2)}, {vr(A+4*T,4)}")
    pv(0)
    for n, (qt, b) in enumerate(units):
        A = O + 8*(n & 1); Z = Q + 4*n
        if n + 1 < 8: pv(n + 1)
        for k in range(8): g(f"v_mul_f32 v{A+k}, v{(L0, L1)[qt]}, v{A+k}")
        for k in range(4): g(cvt(Z+k, A+2*k, A+2*k+1))
        if n == 4: g(f"s_add_u32 s{sOut}, s{sOut}, 131072")
        g(f"buffer_store_dwordx4 {vr(Z,4)}, v{vEx}, {W}, s{sOut} offen offset:{1024*b} sc1")
    g(f"s_add_u32 s{sNn}, s{sNn}, 1\ns_add_u32 s{sS}, s{sS}, 4")
    g("s_waitcnt vmcnt(0)")
    set_flag(g, sFo, f"s{sNn}", t0)
    g(f"s_cmp_lt_u32 s{sNn}, 16\ns_cbranch_scc1 FA_loop")
    tstamp(g, o, 5)
    g("s_endpgm")

def gen_fg(g, o, NG=8):
    S_WO, S_OUT = 24, 28
    sIt, sCg, sPar = 32, 33, 34
    XF = 0; A = 128; R = 136; vEx, vFa, vRq, vSt, vLw, t0, t1, t2 = 160, 161, 162, 163, 164, 165, 166, 167
    g("FG_entry:")
    srd(g, S_WO, 64, 4*MB_); srd(g, S_OUT, 80, 4*MB_)
    g(f"""s_and_b32 s{sCg}, s{sK}, 15
    s_lshr_b32 s{sIt}, s{sK}, 4
    v_lshrrev_b32 v{t0}, 2, v{vL}
    v_and_b32 v{t1}, 3, v{vL}
    v_lshlrev_b32 v{t2}, 10, v{t0}
    v_lshl_add_u32 v{t2}, v{t1}, 4, v{t2}
    v_lshlrev_b32 v{vEx}, 4, v{vL}
    s_lshl_b32 s{sT3}, s{sW}, 15
    v_add_u32 v{t0}, s{sT3}, v{vEx}
    s_lshl_b32 s{sT0}, s{sW}, 20
    s_lshl_b32 s{sT1}, s{sCg}, 6
    s_add_u32 s{sT0}, s{sT0}, s{sT1}
    s_waitcnt lgkmcnt(0)
    s_barrier""")
    for ps in range(2):
        for m in range(32):
            g(f"""s_add_u32 m0, s{sT3}, {1024*m}
            s_nop 0
            buffer_load_dwordx4 v{t2}, s[{S_WO}:{S_WO+3}], s{sT0} offen lds
            s_add_u32 s{sT0}, s{sT0}, 16384""")
        g("s_waitcnt vmcnt(0)")
        for ks in range(16):
            for T in range(2):
                for hh in range(2):
                    g(f"ds_read_b64_tr_b16 {vr(((16*ps+ks)*2+T)*4+2*hh, 2, 'a')}, v{t0} offset:{(32*ks+16*hh)*64 + 8*T}")
            if ks % 2 == 1: g("s_waitcnt lgkmcnt(0)")
    g(f"""v_and_b32 v{t0}, 7, v{vL}
    s_lshl_b32 s{sT0}, s{sW}, 3
    v_add_u32 v{t0}, s{sT0}, v{t0}
    v_lshlrev_b32 v{vFa}, 2, v{t0}
    v_and_b32 v{t0}, 15, v{vL}
    v_lshrrev_b32 v{t1}, 4, v{vL}
    v_lshlrev_b32 v{vSt}, 11, v{t0}
    v_lshl_add_u32 v{vSt}, v{t1}, 4, v{vSt}
    s_lshl_b32 s{sT0}, s{sW}, 11
    v_add_u32 v{vLw}, s{sT0}, v{vEx}
    s_mov_b32 s{sPar}, 0
    s_barrier""")
    tstamp(g, o, 5)
    g("FG_loop:")
    g(f"""s_lshr_b32 s{sT0}, s{sIt}, 3
    s_add_u32 s{sT0}, s{sT0}, 1
    v_mov_b32 v{vRq}, s{sT0}
    s_lshr_b32 s{sT0}, s{sIt}, 1
    s_and_b32 s{sT0}, s{sT0}, 3
    s_lshl_b32 s{sT0}, s{sT0}, 7
    s_add_u32 s{sT0}, s{sT0}, {FL_FA}""")
    spin(g, "FG_w", vFa, f"s{sT0}", vRq, t0)
    g(f"""s_lshl_b32 s{sT0}, s{sIt}, 17
    s_lshl_b32 s{sT1}, s{sW}, 15
    s_add_u32 s{sT0}, s{sT0}, s{sT1}
    s_add_u32 s{sT0}, s{sT0}, {WS_OX}""")
    for n in range(32):
        g(f"buffer_load_dwordx4 {vr(XF+4*n,4)}, v{vEx}, {W}, s{sT0} offen offset:{1024*(n&3)} sc1")
        if n % 4 == 3: g(f"s_add_u32 s{sT0}, s{sT0}, 4096")
    for n in range(32):
        g(f"s_waitcnt vmcnt({31-n})")
        for T in range(2): g(f"{MF16} {vr(A+4*T,4)}, {vr((2*n+T)*4,4,'a')}, {vr(XF+4*n,4)}, {vr(A+4*T,4) if n else 0}")
    g(f"v_add_u32 v{t0}, s{sPar}, v{vLw}\nv_add_u32 v{t1}, s{sPar}, v{vEx}")
    g(f"ds_write_b128 v{t0}, {vr(A,4)}\nds_write_b128 v{t0}, {vr(A+4,4)} offset:1024")
    g(f"""s_waitcnt lgkmcnt(0)
    s_barrier
    s_cmp_eq_u32 s{sW}, 0
    s_cbranch_scc0 FG_next""")
    for k in range(6): g(f"ds_read_b128 {vr(R+4*k,4)}, v{t1} offset:{2048+1024*k}")
    g(f"""s_lshl_b32 s{sT0}, s{sIt}, 15
    s_lshl_b32 s{sT1}, s{sCg}, 6
    s_add_u32 s{sT0}, s{sT0}, s{sT1}
    s_waitcnt lgkmcnt(0)""")
    for w_ in range(3):
        for k in range(8): g(f"v_add_f32 v{A+k}, v{A+k}, v{R+8*w_+k}")
    for k in range(4): g(cvt(R+k, A+2*k, A+2*k+1))
    g(f"buffer_store_dwordx4 {vr(R,4)}, v{vSt}, s[{S_OUT}:{S_OUT+3}], s{sT0} offen offset:1024{' sc1' if o.fgsc else ''}")
    g(f"""FG_next:
    s_xor_b32 s{sPar}, s{sPar}, 8192
    s_add_u32 s{sIt}, s{sIt}, {NG}
    s_cmp_lt_u32 s{sIt}, 128
    s_cbranch_scc1 FG_loop""")
    tstamp(g, o, 6)
    g("s_endpgm")
```

```python
import sys, math
from asmgen import *

from cfg import *
import roles

class Opt:
    nsteps = 64
    prof = 0
    ofirst = 1
    nt = ''
    gspread = 1
    xpf = 1
    diag = 0
    ronly = 0
    dbg_m = False
    stamps = False
    rdelay = 20
    force_slow = 0
    nofar = 0
    noexp = 0
    pdelay = [12, 12, 12, 12]
    lateb1 = [0, 0, 0, 0]
    posa = ['p10v1', 'p10v2', 'p18v2/p18v3', 'p18v2/p18v3']
    posm = ['40/70', '30/60', '20/50', '20/50']
    late = [0, 0, 0, 0]
    hint = 0
    opt = 0
    warm = 0
    hb = 0
    hbw = 3
    hbv = 3
    hbpre = 2
    early = [0, 0, 0, 0]
    fa = [0, 0, 0, 0]
    fb = [0, 0, 0, 0]
    b0 = 0
    hpos = 11
    hw = 0
    hextra = 5
    hd = [0, 4, 12, 24]
    nofark = 0
    nofarv = 0
    pgap = 0
    sel = []
    rgap = 0
    uspread = 1
    rt = 0
    noreset = 0
    rs = 8192
    rwait = 2

def gen_R(g, o):
    vQ, vIdx, vMrd, vXwr, vXrd, vKrd, vOwr, vWo, vJ, vPst, vMst, vMask = range(12)
    V = 12; AQ, AK, AV = 20, 24, 28; KX = 32; MF = 64
    def M(t): return MF + 4*t
    T = MF
    TMP1 = MF + 32
    perm = [("q",1),("q",2),("q",3),("k",0),("k",1),("k",2),("v",0),("v",1),("v",2),("v",3),("o",0),("o",1)]
    loc = {key: (("a", 32*n) if n < 8 else ("v", 128 + 32*(n-8))) for n, key in enumerate(perm)}
    ploc = dict(loc); ploc[("q",0)] = ("v", KX); ploc[("k",3)] = ("v", TMP1)
    slot = {("q",0): 0, ("k",3): 1, ("o",2): 2, ("o",3): 3}
    order = [(m, c) for m in ("oqkv" if o.ofirst else "qkvo") for c in range(4)]
    def cbase(n):
        if not o.ofirst or n < 4: return L_W + (n & 3) * 32768
        return (0, L_W, L_W + 32768)[(n - 4) % 3]
    def wfrag(mat, r, f):
        k, b = loc[(mat, r)]
        return vr(b + 8*f, 8, k)
    sT0, sT1, sT2, sT3 = 20, 21, 22, 23
    sPw, sPh, sExw, sMr, sMw, sMz, sKV, sEx, sRange, sM0k = 24, 25, 26, 27, 28, 29, 30, 31, 32, 33
    sO1, sO2, sO3, sMoff = 34, 35, 36, 37
    sMaskOdd, sMaskD, sMaskLo8 = 38, 40, 48
    sC, sPoff, sRoff = 50, 51, 3
    sVc, sFlB, sKn, sVn, sFailA, sFlE, sReq, sDump = 52, 53, 54, 55, 56, 57, 58, 59
    sCu = 35
    sHs, sHp, sHv = 34, 8, 60
    S_Q, S_K, S_V, S_O = 52, 56, 60, 64
    sSt = 68
    W = f"s[{S_WS}:{S_WS+3}]"
    g("R_entry:")
    if o.prof == 3: g("s_memrealtime s[68:69]")
    srd(g, S_Q, 40, 4*MB_); srd(g, S_K, 48, 4*MB_); srd(g, S_V, 56, 4*MB_); srd(g, S_O, 64, 4*MB_)
    srd(g, S_A, 32, 8192)
    g(f"""v_and_b32 v{T}, 63, v0
    v_and_b32 v{T+1}, 15, v0
    v_lshrrev_b32 v{T+2}, 4, v{T}
    v_lshrrev_b32 v{T+3}, 2, v{T+1}
    v_and_b32 v{T+4}, 3, v0""")
    l, i, gg, a, c = T, T+1, T+2, T+3, T+4
    vDq, vDo, vTq, vTo, t0, t1, t2, vTT = T+5, T+6, T+7, T+8, T+9, T+10, T+11, T+16
    g(f"""s_and_b32 s{sT0}, s{sW}, 1
    s_lshl_b32 s{sT0}, s{sT0}, 3
    v_and_b32 v{t0}, 1, v{gg}
    v_lshlrev_b32 v{t0}, 2, v{t0}
    v_or_b32 v{t0}, s{sT0}, v{t0}
    v_xor_b32 v{t0}, v{t0}, v{i}
    v_lshlrev_b32 v{t0}, 4, v{t0}
    v_lshl_add_u32 v{vDq}, v{gg}, 13, v{t0}
    s_lshl_b32 s{sT0}, s{sW}, 15
    v_add_u32 v{vDq}, s{sT0}, v{vDq}""")
    g(f"""s_and_b32 s{sT0}, s{sW}, 1
    s_lshr_b32 s{sT1}, s{sW}, 1
    s_lshl_b32 s{sT1}, s{sT1}, 4
    s_add_u32 s{sT3}, s{sT0}, s{sT1}
    s_lshl_b32 s{sT3}, s{sT3}, 10
    s_lshl_b32 s{sT0}, s{sW}, 2
    v_xor_b32 v{vDo}, s{sT0}, v{l}
    v_lshlrev_b32 v{vDo}, 4, v{vDo}
    v_add_u32 v{vDo}, s{sT3}, v{vDo}
    s_and_b32 s{sT0}, s{sW}, 1
    s_lshr_b32 s{sT1}, s{sW}, 1
    s_lshl_b32 s{sT1}, s{sT1}, 2
    s_add_u32 s{sT3}, s{sT0}, s{sT1}
    s_lshl_b32 s{sT3}, s{sT3}, 10""")
    g("s_waitcnt lgkmcnt(0)")
    def dma_chunk(n):
        mat, cc = order[n]
        base = cbase(n)
        nt = " nt" if mat in o.nt else ""
        if mat != "o":
            S = {"q": S_Q, "k": S_K, "v": S_V}[mat]
            g(f"s_lshl_b32 s{sT0}, s{sH}, 8")
            g(f"s_add_u32 s{sT0}, s{sT0}, {(64*(cc>>1) + 16*(cc&1))*8192}")
            g(f"s_lshl_b32 s{sT1}, s{sW}, 10")
            g(f"s_add_u32 s{sT1}, s{sT1}, {base}")
            for mm in range(8):
                g(f"s_mov_b32 m0, s{sT1}")
                g(f"s_add_u32 s{sT1}, s{sT1}, 4096")
                g(f"buffer_load_dwordx4 v{vDq}, s[{S}:{S+3}], s{sT0} offen{nt} lds")
                g(f"s_add_u32 s{sT0}, s{sT0}, {(32 if mm % 2 == 0 else 96)*8192}")
        else:
            g(f"s_lshl_b32 s{sT0}, s{sH}, 17")
            g(f"s_add_u32 s{sT0}, s{sT0}, {(8*(cc>>1) + 2*(cc&1))*1024}")
            g(f"s_add_u32 s{sT1}, s{sT3}, {base}")
            for mm in range(8):
                g(f"s_mov_b32 m0, s{sT1}")
                g(f"s_add_u32 s{sT1}, s{sT1}, {(2 if mm % 2 == 0 else 6)*1024}")
                g(f"buffer_load_dwordx4 v{vDo}, s[{S_O}:{S_O+3}], s{sT0} offen{nt} lds")
                g(f"s_add_u32 s{sT0}, s{sT0}, {(4 if mm % 2 == 0 else 28)*1024}")
    g(f"""v_mov_b64 {vr(T+28,2)}, 0
    v_mov_b64 {vr(T+30,2)}, 0
    v_lshlrev_b32 v{t0}, 4, v{l}
    s_lshl_b32 s{sT0}, s{sH}, 8
    s_add_u32 s{sT0}, s{sT0}, {WS_FL + (65536 if o.ronly else 0)}
    s_cmp_eq_u32 s{sW}, 0
    s_cselect_b64 exec, 0xffff, 0
    buffer_store_dwordx4 {vr(T+28,4)}, v{t0}, {W}, s{sT0} offen sc1
    s_mov_b64 exec, -1""")
    dma_chunk(0)
    ih = T+17; i7 = T+18; gh = T+19; gl = T+20
    g(f"""v_lshrrev_b32 v{ih}, 3, v{i}
    v_and_b32 v{i7}, 7, v{i}
    v_lshrrev_b32 v{gh}, 1, v{gg}
    v_and_b32 v{gl}, 1, v{gg}
    v_lshlrev_b32 v{vKrd}, 4, v{l}
    v_lshlrev_b32 v{t0}, 4, v{i7}
    v_lshl_add_u32 v{vMrd}, v{gg}, 7, v{t0}
    v_lshl_add_u32 v{vQ}, v{ih}, 9, v{vMrd}
    s_lshl_b32 s{sT0}, s{sW}, 11
    v_add_u32 v{vQ}, s{sT0}, v{vQ}
    v_cmp_gt_u32 s[{sMaskLo8}:{sMaskLo8+1}], 8, v{i}
    v_mov_b32 v{t0}, 0xeeeeeeee
    v_mov_b32 v{t1}, 0x44444444
    v_cndmask_b32 v{vIdx}, v{t0}, v{t1}, s[{sMaskLo8}:{sMaskLo8+1}]
    v_lshl_add_u32 v{vOwr}, v{ih}, 3, v{vMrd}
    s_lshl_b32 s{sT0}, s{sW}, 9
    v_add_u32 v{vOwr}, s{sT0}, v{vOwr}
    v_lshl_add_u32 v{vXwr}, v{gh}, 4, v{i}
    v_lshlrev_b32 v{vXwr}, 3, v{vXwr}
    v_mul_u32_u24 v{t0}, {XPL}, v{gl}
    v_add_u32 v{vXwr}, v{vXwr}, v{t0}
    s_lshl_b32 s{sT0}, s{sW}, 8
    v_add_u32 v{vXwr}, s{sT0}, v{vXwr}
    v_mul_u32_u24 v{vPst}, {4*o.rs if o.uspread else o.rs}, v{gh}
    v_mul_u32_u24 v{t0}, {2*o.rs if o.uspread else 4096}, v{ih}
    v_add_u32 v{vPst}, v{t0}, v{vPst}
    v_mul_u32_u24 v{t0}, {o.rs if o.uspread else 2048}, v{gl}
    v_add_u32 v{vPst}, v{t0}, v{vPst}
    v_lshl_add_u32 v{vPst}, v{i7}, 3, v{vPst}
    s_mul_i32 s{sT0}, s{sW}, {8*o.rs}
    v_add_u32 v{vPst}, s{sT0}, v{vPst}
    s_mul_i32 s{sRoff}, s{sH}, {o.rs}
    v_lshlrev_b32 v{vMst}, 4, v{gg}
    v_lshl_add_u32 v{vMst}, v{c}, 2, v{vMst}
    s_lshl_b32 s{sT0}, s{sW}, 11
    v_add_u32 v{vMst}, s{sT0}, v{vMst}
    v_lshl_add_u32 v{vXrd}, v{gg}, 2, v{a}
    v_lshlrev_b32 v{vXrd}, 3, v{vXrd}
    v_mul_u32_u24 v{t0}, {XPL}, v{c}
    v_add_u32 v{vXrd}, v{vXrd}, v{t0}
    s_lshl_b32 s{sT0}, s{sW}, 13
    s_add_u32 s{sT0}, s{sT0}, {L_W}
    v_add_u32 v{vWo}, s{sT0}, v{vKrd}
    v_mov_b32 v{t0}, 0xf149f2ca
    v_cmp_gt_u32 vcc, 2, v{gg}
    v_cndmask_b32 v{vMask}, 0, v{t0}, vcc
    v_and_b32 v{t0}, 1, v{a}
    v_cmp_eq_u32 s[{sMaskOdd}:{sMaskOdd+1}], 1, v{t0}
    v_lshrrev_b32 v{t0}, 1, v{a}
    v_lshl_add_u32 v{t0}, v{c}, 1, v{t0}""")
    for d in range(4):
        g(f"v_cmp_eq_u32 s[{sMaskD+2*d}:{sMaskD+2*d+1}], {d}, v{t0}")
    for r, s_ in ((1, sO1), (2, sO2), (3, sO3)):
        g(f"s_add_u32 s{s_}, s{sW}, {r}\ns_and_b32 s{s_}, s{s_}, 3\ns_lshl_b32 s{s_}, s{s_}, 9")
    g(f"s_mov_b32 s{sC}, {f32(CSCALE)}")
    g(f"s_lshl_b32 s{sPoff}, s{sH}, 6")
    g(f"s_lshl_b32 s{sMoff}, s{sH}, 6")
    g(f"""v_and_b32 v{t0}, 1, v{a}
    v_lshl_add_u32 v{t2}, v{gl}, 1, v{t0}
    v_lshrrev_b32 v{vTT}, 1, v{a}
    v_lshlrev_b32 v{vTq}, 5, v{vTT}
    v_lshl_add_u32 v{vTq}, v{c}, 3, v{vTq}
    v_xor_b32 v{t2}, s{sW}, v{t2}
    v_lshl_add_u32 v{vTq}, v{t2}, 6, v{vTq}
    v_lshl_add_u32 v{vTo}, v{t0}, 10, v{vTq}
    v_lshl_add_u32 v{vTq}, v{t0}, 8, v{vTq}
    v_lshl_add_u32 v{vTq}, v{gg}, 10, v{vTq}
    v_lshl_add_u32 v{vTo}, v{gl}, 12, v{vTo}
    v_lshl_add_u32 v{vTo}, v{gh}, 11, v{vTo}
    s_lshl_b32 s{sT0}, s{sW}, 13
    v_add_u32 v{vTo}, s{sT0}, v{vTo}""")
    g(f"""v_mov_b32 v{t1}, 1
    s_cmp_eq_u32 s{sW}, 0
    s_cselect_b64 exec, 1, 0
    s_waitcnt vmcnt(8)
    buffer_atomic_add v{t1}, off, s[{S_DBG}:{S_DBG+3}], 0 offset:4
    s_mov_b64 exec, -1""")
    SN = T+12
    g(f"v_mov_b32 v{SN}, -1")
    g(f"s_add_u32 s{sT0}, s{sRoff}, {WS_PART}")
    for k in range(4): g(f"v_not_b32 v{T+24+k}, v{a}")
    for hf in range(2):
        g(f"buffer_store_dwordx4 {vr(T+24,4)}, v{vQ}, {W}, s{sT0} offen offset:{1024*hf}")
    g(f"s_add_u32 s{sT0}, s{sMoff}, {WS_M}")
    for sl in range(4):
        g(f"buffer_store_dword v{SN}, v{vMst}, {W}, s{sT0} offen")
        g(f"s_add_u32 s{sT0}, s{sT0}, 8192")
    if o.hint: g(f"""v_mov_b32 v{t1}, 0
    v_mov_b32 v{t2}, 0
    v_lshlrev_b32 v{t0}, 3, v{l}
    s_lshl_b32 s{sT0}, s{sH}, 12
    s_lshl_b32 s{sT1}, s{sW}, 10
    s_add_u32 s{sT0}, s{sT0}, s{sT1}
    s_add_u32 s{sT0}, s{sT0}, {WS_HINT}
    buffer_store_dwordx2 {vr(t1,2)}, v{t0}, {W}, s{sT0} offen sc1
    buffer_store_dwordx2 {vr(t1,2)}, v{t0}, {W}, s{sT0} offen offset:512 sc1""")
    g(f"""v_lshl_add_u32 v{t0}, v{ih}, 2, v{gg}
    v_lshlrev_b32 v{t0}, 4, v{t0}
    v_lshl_add_u32 v{t0}, v{i7}, 10, v{t0}
    s_lshl_b32 s{sT0}, s{sW}, 8
    buffer_load_dwordx4 {vr(V,4)}, v{t0}, s[{S_A}:{S_A+3}], s{sT0} offen
    buffer_load_dwordx4 {vr(V+4,4)}, v{t0}, s[{S_A}:{S_A+3}], s{sT0} offen offset:128""")
    LA = 3 if o.ofirst else 4
    for n in range(1, LA): dma_chunk(n)
    g(f"s_add_u32 s{sMoff}, s{sMoff}, {WS_M}\ns_add_u32 s{sRoff}, s{sRoff}, {WS_PART}\ns_add_u32 s{sPoff}, s{sPoff}, {WS_PART}")
    for n in range(16):
        mat, cc = order[n]
        base = cbase(n)
        rem = min(LA - 1, 15 - n) * 8 + (2 if n == 15 else 0)
        g(f"s_waitcnt vmcnt({rem})")
        g("s_barrier")
        if o.prof == 3 and n in (0, 3, 7, 11, 15): g(f"s_memrealtime s[{68+2*(1+(n+1)//4)}:{69+2*(1+(n+1)//4)}]")
        if n == 0:
            g(f"""s_cmp_eq_u32 s{sW}, 0
            s_cbranch_scc0 R_noinit
            v_mov_b32 v{t0}, 8
            v_mov_b32 v{t1}, 1
            s_mov_b64 exec, 1
            buffer_atomic_add v{t1}, v{t0}, s[{S_DBG}:{S_DBG+3}], 0 offen
            s_mov_b64 exec, -1
            R_noinit:""")
        if mat == "o":
            for r in range(4):
                k, b = loc[(mat, r)] if r < 2 else ("v", (KX, TMP1)[r-2])
                if r == 0:
                    g(f"v_mul_u32_u24 v{t0}, {4096+128}, v{vTT}")
                    g(f"v_xor_b32 v{t0}, v{t0}, v{vTo}")
                else:
                    g(f"v_xor_b32 v{t0}, {8192*r}, v{vTo}")
                g(f"v_add_u32 v{t0}, {base}, v{t0}")
                for u in range(4):
                    g(f"ds_read_b64_tr_b16 {vr(b + 8*u + 2*cc, 2, k)}, v{t0} offset:{256*u}")
                if r == 1: g("s_waitcnt lgkmcnt(0)")
        else:
            mm_, hh = cc >> 1, cc & 1
            for r in range(4):
                k, b = ploc[(mat, r)]
                if r == 0: g(f"s_lshl_b32 s{sT0}, s{sW}, 13")
                else: g(f"s_lshl_b32 s{sT0}, s{(sO1,sO2,sO3)[r-1]}, 4")
                g(f"s_add_u32 s{sT0}, s{sT0}, {base}")
                g(f"v_add_u32 v{t0}, s{sT0}, v{vTq}")
                if r == 0:
                    g(f"v_lshl_add_u32 v{t0}, v{vTT}, 12, v{t0}")
                    g(f"v_xor_b32 v{t1}, 4096, v{t0}")
                for x in range(2):
                    for dd in range(2):
                        ad, off = (t0, 4096*x + 512*dd) if r else ((t0, t1)[x], 512*dd)
                        g(f"ds_read_b64_tr_b16 {vr(b + 8*(2*mm_+x) + 4*hh + 2*dd, 2, k)}, v{ad} offset:{off}")
                if r == 1: g("s_waitcnt lgkmcnt(0)")
        g("s_waitcnt lgkmcnt(0)")
        g("s_barrier")
        fa_, fr_, fv_ = AQ, AQ+1, AQ+2
        if n == 9:
            g(f"v_mov_b32 v{fa_}, 8\nv_mov_b32 v{fr_}, 32")
            g(f"buffer_load_dword v{fv_}, v{fa_}, s[{S_DBG}:{S_DBG+3}], 0 offen sc1")
        if n == 12:
            g(f"v_cmp_gt_u32 vcc, v{fr_}, v{fv_}\ns_cbranch_vccz R_init_ok")
            roles.spin(g, "R_init", fa_, 0, fr_, fv_, f"s[{S_DBG}:{S_DBG+3}]")
            g(f"""s_lshl_b32 s{sFlB}, s{sH}, 7
            s_add_u32 s{sFlB}, s{sFlB}, {FL_B + 8}
            s_add_u32 s{sFlE}, s{sFlB}, 24
            v_lshlrev_b32 v{fa_}, 2, v{c}
            v_mov_b32 v{fr_}, 1
            buffer_load_dword v{fv_}, v{fa_}, {W}, s{sFlB} offen sc1""")
        if n == 14:
            g(f"v_cmp_gt_u32 vcc, v{fr_}, v{fv_}\ns_cbranch_vccz R_kv0_ok")
            roles.spin(g, "R_kv0", fa_, f"s{sFlB}", fr_, fv_)
            g(f"""s_lshl_b32 s{sKV}, s{sH}, 13
            s_add_u32 s{sT0}, s{sKV}, {WS_KX}
            s_lshl_b32 s{sM0k}, s{sW}, 11
            s_mov_b32 m0, s{sM0k}
            s_nop 0
            buffer_load_dwordx4 v{vQ}, {W}, s{sT0} offen sc1 lds
            buffer_load_dwordx4 v{vQ}, {W}, s{sT0} offen offset:1024 sc1 lds""")
        if n + LA < 16: dma_chunk(n + LA)
        assert o.ofirst
        wb_ = {3: [(KX, 2), (TMP1, 3)], 14: [(KX, 0)], 15: [(TMP1, 1)]}.get(n, [])
        for src, sl in wb_:
            g(f"v_add_u32 v{t0}, {sl*32768}, v{vWo}")
            for f in range(8):
                g(f"ds_write_b128 v{t0}, {vr(src+4*f,4)} offset:{1024*f}")
            g("s_waitcnt lgkmcnt(0)")
    def lds_w(mat, cc, f, hf):
        return slot[(mat, cc)]*32768 + f*2048 + hf*1024
    roles.tstamp(g, o, 1, t0)
    roles.tstamp(g, o, 2, t0)
    if o.diag == 2: g("s_memrealtime s[100:101]")
    for k in (0, 2): g(f"v_mov_b64 {vr(M(0)+k,2)}, {vr(V+k,2)}\nv_mov_b64 {vr(M(2)+k,2)}, {vr(V+4+k,2)}")
    g(f"""s_mov_b32 s{sStep}, 0
    s_mov_b32 s{sFailA}, 0
    s_mov_b32 s{sMr}, {WS_M}""")
    o.stamp_names = list(o.sel)
    def stamp(name="", lvl=1):
        if (o.stamps >= lvl and not o.sel) or name in o.sel:
            if name not in o.stamp_names: o.stamp_names.append(name)
            n = o.stamp_names.index(name)
            assert n < 13
            g(f"{'s_memrealtime' if o.rt else 's_memtime'} s[{sSt+2*n}:{sSt+2*n+1}]")
    X = M(0); SX1 = M(4); PX = M(5); PM = M(6); O0 = M(7); O1 = M(8); LL = M(9); ONES = M(10); VV = M(11)
    vW2 = PM + 2; RC = PM + 3; E = PX
    WOL = {(2,0): M(12), (3,0): M(14), (2,1): KX, (3,1): KX+8, (2,2): KX+16, (3,2): KX+24, (2,3): M(0), (3,3): M(2)}
    RS = [(M(12), M(13)), (M(14), M(15)), (M(6), M(7))]; SEL = M(9); DD = M(10); CK = M(8)
    PS = [(M(12), M(13)), (M(14), M(15)), (M(10), M(11))]; vPf, vSn = M(9), M(9)+1
    SM, SX0 = AQ, AK
    OA = [AQ, AK, SX1, AV]; OF = [O0, O1, LL, PX]
    def wq0():  return [f"ds_read_b128 {vr(KX+4*f,4)}, v{vWo} offset:{lds_w('q',0,f>>1,f&1)}" for f in range(8)]
    def zacc(): return [f"v_mov_b64 {vr(AQ+k,2)}, 0" for k in range(0, 12, 2)]
    def pf_addr(w):
        L = [f"v_lshlrev_b32 v{vPf}, 3, v{vKrd}", f"v_and_b32 v{vPf}, 0x7ff, v{vPf}", f"v_mov_b32 v{vSn}, -1"]
        if w in (0, None):
            L += [f"s_sub_u32 s{sT0}, s{sFlB}, s{sVn}", "s_mov_b64 exec, 0xf0000",
                  f"v_lshrrev_b32 v{vPf}, 5, v{vPf}", f"v_add_u32 v{vPf}, s{sT0}, v{vPf}", "s_mov_b64 exec, -1",
                  f"v_writelane_b32 v{vJ}, s{sStep}, 20"]
        if o.hint and w in (1, None):
            L += [f"s_sub_u32 s{sT0}, s{sHs}, s{sVn}", f"s_sub_u32 s{sT0}, s{sT0}, s{sH}", f"s_add_u32 s{sT0}, s{sT0}, 2048", "s_mov_b64 exec, 0x7fff0000",
                  f"v_add_u32 v{vPf}, s{sT0}, v{vPf}", "s_mov_b64 exec, -1"]
        return L
    def step_scalars():
        return [x.strip() for x in (f"""s_xor_b32 s{sPh}, s{sStep}, s{sH}
        s_and_b32 s{sPh}, s{sPh}, 1
        s_lshl_b32 s{sT3}, s{sH}, 13
        s_add_u32 s{sT0}, s{sStep}, 3
        s_and_b32 s{sT0}, s{sT0}, 3
        s_lshl_b32 s{sMz}, s{sT0}, 13
        s_add_u32 s{sMz}, s{sMz}, s{sMoff}
        s_add_u32 s{sEx}, s{sKV}, {WS_EX}
        s_add_u32 s{sVc}, s{sKV}, {WS_VX}
        s_add_u32 s{sT1}, s{sStep}, 1
        s_min_u32 s{sT1}, s{sT1}, {0 if o.nofar else 63}
        s_lshl_b32 s{sT1}, s{sT1}, 18
        s_add_u32 s{sKV}, s{sT1}, s{sT3}
        s_add_u32 s{sKn}, s{sKV}, {WS_KX}
        s_lshl_b32 s{sT2}, s{sW}, 11
        s_add_u32 s{sVn}, s{sKV}, s{sT2}
        s_add_u32 s{sVn}, s{sVn}, {WS_VX}
        s_xor_b32 s{sM0k}, s{sM0k}, 8192
        s_mov_b32 m0, s{sM0k}
        s_cmp_eq_u32 s{sStep}, {o.nsteps-1}
        s_cselect_b32 s{sRange}, 0, {0 if o.force_slow else 48 << 23}""").split("\n")] + ([f"s_lshl_b32 s{sT0}, s{sStep}, 11", f"s_add_u32 s{sT0}, s{sT0}, {WS_HINT}", f"s_add_u32 s{sHs}, s{sT0}, s{sH}", f"s_add_u32 s{sT0}, s{sT0}, s{sCu}",
            f"s_add_u32 s{sHp}, s{S_WS}, s{sT0}", f"s_addc_u32 s{sHp+1}, s{S_WS+1}, 0"] if o.hint else [])
    if o.hint: g(f"s_getreg_b32 s{sCu}, hwreg(HW_REG_HW_ID, 8, 1)\ns_lshl_b32 s{sCu}, s{sCu}, 6")
    for x in wq0() + zacc() + step_scalars(): g(x)
    g(f"s_add_u32 s{sPw}, s{sPoff}, 4096")
    if o.stamps: g(f"s_mov_b32 s{sDump}, {WS_DBG + 512*1024}")
    g("s_waitcnt vmcnt(0) lgkmcnt(0)")
    g("s_barrier")
    for w in range(4):
        if w < 3: g(f"s_cmp_eq_u32 s{sW}, {w}\ns_cbranch_scc0 R_first{w}")
        for x in pf_addr(w): g(x)
        g(f"s_branch R{w}_loop")
        if w < 3: g(f"R_first{w}:")
    def smf(acc, A, B): g(f"v_smfmac_f32_16x16x64_bf16 {vr(acc,4)}, {A}, {B}, v{vIdx}")
    def mf(D, A, B, C, op="v_mfma_f32_16x16x32_bf16"): g(f"{op} {vr(D,4)}, {A}, {B}, {C}")
    m16 = "v_mfma_f32_16x16x16_bf16"
    def wb(mat, t):
        r, f = t >> 2, t & 3
        if (mat, r) in slot: return vr(KX + 8*f, 8)
        return wfrag(mat, r, f)
    ACC = {"q": AQ, "k": AK, "v": AV}
    def gm(mat, t, *fill):
        smf(ACC[mat], vr(M(t),4), wb(mat, t))
        stamp(f"{mat}{t}", 9)
        for x in fill: g(x)
    def dpp(dst, src): return f"v_mov_b32_dpp v{dst}, v{src} row_ror:8 row_mask:0xf bank_mask:0xf"
    def wkr(n): return f"ds_read_b128 {vr(KX+4*n,4)}, v{vWo} offset:{lds_w('k',3,n>>1,n&1)}"
    def kxr(n): return f"ds_read_b128 {vr(KX+4*n,4)}, v{vKrd} offset:{L_KB+1024*n}"
    def xr(b, x): return f"ds_read_b64_tr_b16 {vr(X+4*b+2*x,2)}, v{vXrd} offset:{L_XB+(32*b+16*x)*8}"
    def wor(r, n): return f"ds_read_b128 {vr(WOL[(r, n>>1)]+4*(n&1),4)}, v{vW2} offset:{lds_w('o',r,n>>1,n&1)-65536}"
    def cvt(d, a_, b_): return f"v_cvt_pk_bf16_f32 v{d}, v{a_}, v{b_}"
    def ex(r): return f"v_exp_f32 v{r}, v{r}"
    xb = lambda b: vr(X+4*b, 4)
    def ld2(regs, so):
        return [f"buffer_load_dwordx4 {vr(regs[0],4)}, v{vQ}, {W}, s{so} offen sc1", f"buffer_load_dwordx4 {vr(regs[1],4)}, v{vQ}, {W}, s{so} offen offset:1024 sc1"]
    def issue2(regs, so):
        for x in ld2(regs, so): g(x)
    def check_part(regs, n):
        r0, r1 = regs
        g(f"s_waitcnt vmcnt({n+1})")
        mf(DD, vr(SEL,4), vr(r0,4), 0)
        g(f"v_bitop3_b32 v{CK}, v{r0}, v{r0+2}, v{CK+2} bitop3:0x7e")
        g(f"s_waitcnt vmcnt({n})")
        mf(DD, vr(SEL,4), vr(r1,4), vr(DD,4))
        g(f"v_bitop3_b32 v{CK+1}, v{r1}, v{r1+2}, v{CK+2} bitop3:0x7e")
        g(f"v_bitop3_b32 v{CK}, v{CK}, v{CK+1}, 1 bitop3:0xa8")
        g(f"v_cmp_ne_u32 vcc, 0, v{CK}")
    def check_m(regs, n):
        r0, r1 = regs
        g(f"s_waitcnt vmcnt({n+1})")
        g(f"v_max3_u32 v{CK}, v{r0}, v{r0+1}, v{r0+2}")
        g(f"v_max_u32 v{CK}, v{CK}, v{r0+3}")
        g(f"s_waitcnt vmcnt({n}) lgkmcnt(0)")
        g(f"v_max3_u32 v{CK}, v{CK}, v{r1}, v{r1+1}")
        g(f"v_max3_u32 v{CK}, v{CK}, v{r1+2}, v{r1+3}")
        g(f"v_cmp_eq_u32 vcc, -1, v{CK}")
        for k in (0, 2): g(f"v_mov_b64 {vr(M(0)+k,2)}, {vr(r0+k,2)}")
        for k in (0, 2): g(f"v_mov_b64 {vr(M(2)+k,2)}, {vr(r1+k,2)}")
    def post_owr():
        g(dpp(O0+2, O0)); g(dpp(O0+3, O0+1))
        for r_ in (AK, AK+2, SX1, SX1+2, AV, AV+2): g(f"v_mov_b64 {vr(r_,2)}, 0")
    exs = "" if o.noexp else " sc1"

    def loop(w):
        N = f"R{w}"
        def mrd(t): return f"ds_read_b128 {vr(M(t),4)}, v{vMrd} offset:{L_MB + ((w + (t>>2)) & 3)*2048 + 512*(t&3)}"
        nlate = o.late[w]
        late = (zacc() + wq0())[14-nlate:]
        g(".p2align 4")
        g(f"{N}_top:")
        work = step_scalars()
        if w == 0:
            work += [f"s_add_u32 s{sReq}, s{sStep}, 3", f"s_lshr_b32 s{sReq}, s{sReq}, 1", f"s_min_u32 s{sReq}, s{sReq}, 32",
                     f"v_cmp_gt_u32 vcc, s{sReq}, v{vJ}", f"s_and_b32 s{sT0}, vcc_lo, 0xf0000", "s_cbranch_scc1 R_kvwait", "R_kvok:"]
        work += pf_addr(w) + late
        if o.stamps:
            work += ["s_waitcnt lgkmcnt(0)", f"s_lshl_b32 s{sT0}, s{sH}, 8", f"s_add_u32 s{sT0}, s{sT0}, s{sStep}", f"s_lshl_b32 s{sT0}, s{sT0}, 7",
                     f"s_add_u32 s{sDump}, s{sT0}, {WS_DBG + 1024*1024 + w*64*128 - 128 - 256*w}"]
            work += [f"v_writelane_b32 v{vJ}, s{sSt+2*n}, {32+n}" for n in range(len(o.sel) if o.sel else 13)]
            work += [f"v_writelane_b32 v{vJ}, s{sFailA}, 46", f"v_writelane_b32 v{vJ}, s{sBudget}, 47"]
        pp = [int(x) for x in o.posm[w].split("/")]; KP = len(pp)
        FILL = f"v_mov_b32 v{M(4)}, v{M(4)}" if o.warm else "s_nop 0"
        if o.warm:
            w2 = []
            for k, x in enumerate(work):
                w2.append(x)
                if k < 21 and k % 3 == 2: w2.append(FILL)
            work = w2
        while len(work) < pp[-1] + o.fb[w]: work.append(FILL)
        if o.b0 or o.hb:
            for x in work[:o.early[w]]: g(x)
            work = work[o.early[w]:]
            g("s_barrier")
            stamp("hint")
            while len(work) < pp[-1] + o.fb[w]: work.append(FILL)
        inex = False; pend = []
        for k in range(len(work) + 1):
            pend += [j for j in range(KP) if pp[j] == k]
            if not inex:
                for j in pend: issue2(PS[j], sMr)
                pend = []
            if k < len(work):
                g(work[k])
                if work[k].startswith("s_mov_b64 exec"): inex = not work[k].endswith("-1")
        g(f"{N}_poll:")
        for j in range(KP):
            check_m(PS[j], 2*(KP-1))
            if j < KP - 1:
                g(f"s_cbranch_vccz {N}_loop")
                issue2(PS[j], sMr)
                if o.stamps: g(f"s_sub_u32 s{sBudget}, s{sBudget}, 1")
        g(f"s_cbranch_vccnz {N}_pollB")
        g(f"{N}_loop:")
        stamp("start")
        far = [f"buffer_load_dwordx4 v{vQ}, {W}, s{sKn} offen sc1 lds", f"buffer_load_dwordx4 v{vQ}, {W}, s{sKn} offen offset:1024 sc1 lds",
               f"buffer_load_dword v{vJ}, v{vPf}, {W}, s{sVn} offen sc1"]
        pf = [f"s_mov_b64 exec, {'0xfffff' if w == 0 else '0x7fffffff' if (w == 1 and o.hint) else '0xffff'}", far[2], "s_mov_b64 exec, -1"]
        mz = f"buffer_store_dword v{vSn}, v{vMst}, {W}, s{sMz} offen"
        vld = [f"buffer_load_dwordx4 {vr(V+4*k,4)}, v{vQ}, {W}, s{sVc} offen offset:{1024*k} sc1" for k in range(2)]
        gm("q", 0, f"ds_write_b128 v{vQ}, {vr(M(0),4)} offset:{L_MB}", *([f"s_waitcnt vmcnt({2*KP-2})"] if o.opt else []))
        gm("q", 2, f"ds_write_b128 v{vQ}, {vr(M(2),4)} offset:{L_MB+1024}")
        if o.opt:
            gm("k", 0, dpp(M(1), M(0)), dpp(M(1)+1, M(0)+1), f"v_cmp_u_f32 vcc, v{AQ}, v{AQ+1}")
            gm("k", 2, f"v_cmp_u_f32 s[{sT2}:{sT3}], v{AQ+2}, v{AQ+3}", dpp(M(1)+2, M(0)+2))
            gm("v", 0, dpp(M(1)+3, M(0)+3))
            gm("v", 2, f"s_or_b64 vcc, vcc, s[{sT2}:{sT3}]", f"s_cbranch_vccnz {N}_fix")
            g(f"{N}_fixret:")
            gm("q", 1, vld[0], vld[1], "s_waitcnt lgkmcnt(0)", "s_barrier")
            stamp("B1", 2)
            g(mrd(4))
            gm("k", 1, mrd(5), dpp(M(3), M(2)), dpp(M(3)+1, M(2)+1))
            gm("v", 1, mrd(6), dpp(M(3)+2, M(2)+2), dpp(M(3)+3, M(2)+3), *pf)
            gm("q", 3, mrd(7))
        else:
            gm("k", 0, vld[0], dpp(M(1), M(0)))
            gm("k", 2, dpp(M(1)+1, M(0)+1), dpp(M(1)+2, M(0)+2))
            gm("v", 0, vld[1], dpp(M(1)+3, M(0)+3))
            gm("v", 2, dpp(M(3), M(2)), dpp(M(3)+1, M(2)+1))
            gm("q", 1, "s_waitcnt lgkmcnt(0)", "s_barrier")
            stamp("B1", 2)
            g(mrd(4))
            gm("k", 1, mrd(5), dpp(M(3)+2, M(2)+2), dpp(M(3)+3, M(2)+3))
            gm("v", 1, *pf)
            gm("q", 3, mrd(6), mrd(7))
        gm("k", 3, mrd(8), mz)
        gm("v", 3, mrd(9), "s_waitcnt lgkmcnt(5)" + (" vmcnt(4)" if KP > 2 else ""))
        seq = []
        for m_ in range(4): seq += [("q", 4+3*m_), ("q", 5+3*m_), ("q", 6+3*m_), ("k", 4+m_)]
        seq += [("k", t) for t in range(8, 16)]
        ds = [mrd(t) for t in range(10, 16)] + [wkr(n) for n in range(8)]
        issued = 6
        extra = {
          0: [far[0]], 2: [far[1]],
          16: [f"v_mul_f32 v{AQ}, s{sC}, v{AQ}"], 17: [f"v_mul_f32 v{AQ+1}, s{sC}, v{AQ+1}"],
          18: [f"v_mul_f32 v{AQ+2}, s{sC}, v{AQ+2}"], 19: ["s_waitcnt lgkmcnt(0)", f"v_mul_f32 v{AQ+3}, s{sC}, v{AQ+3}"],
          20: [cvt(AQ, AQ, AQ+1)], 21: [kxr(0), cvt(AQ+1, AQ+2, AQ+3)],
          22: [f"ds_write_b64 v{vXwr}, {vr(AQ,2)} offset:{L_XB}"], 23: [kxr(1), f"v_mov_b32 v{AQ}, v{vMask}"],
        }
        nyoung = 6
        if w == 0:
            extra[14] = ["s_mov_b64 exec, 0x100000", f"buffer_store_dword v{vJ}, off, {W}, s{sFlE} sc1", "s_mov_b64 exec, -1"]; nyoung += 1
        if o.stamps:
            extra[15] = ["s_mov_b64 exec, 0xffff", "s_lshl_b64 exec, exec, 32", f"buffer_store_dword v{vJ}, v{vXwr}, {W}, s{sDump} offen", "s_mov_b64 exec, -1"]; nyoung += 1
        for n, (mat, t) in enumerate(seq):
            fill = []
            nxt = seq[n+1] if n+1 < len(seq) else None
            if nxt and nxt[0] == "q":
                wv = " vmcnt(5)" if n == 1 else ""
                fill.append(f"s_waitcnt lgkmcnt({issued - (nxt[1] - 3)}){wv}")
            if n < len(ds): fill.append(ds[n]); issued += 1
            fill += extra.get(n, [])
            gm(mat, t, *fill)
        stamp("kdone", 2)
        gm("v", 5, f"v_mov_b32 v{AQ+1}, v{vMask}", f"v_mov_b64 {vr(AQ+2,2)}, {vr(AQ,2)}", cvt(E, AK, AK+1), cvt(E+1, AK+2, AK+3))
        gm("v", 4, f"ds_write_b64 v{vXwr}, {vr(E,2)} offset:{L_XB+2*XPL}")
        ek = f"buffer_store_dwordx2 {vr(E,2)}, v{vXwr}, {W}, s{sEx} offen{exs}"
        ev = f"buffer_store_dwordx2 {vr(VV+2,2)}, v{vXwr}, {W}, s{sEx} offen offset:{2*XPL}{exs}"
        gm("v", 10, ek)
        gm("v", 11, kxr(2), f"v_mov_b32 v{ONES}, 0x3f803f80")
        gm("v", 6, kxr(3), f"v_mov_b32 v{ONES+1}, 0x3f803f80")
        gm("v", 12, kxr(4), f"v_add_u32 v{vW2}, 0x10000, v{vWo}")
        gm("v", 13, "s_waitcnt lgkmcnt(3)", "s_barrier")
        stamp("B2")
        g(xr(0,0)); g(xr(0,1))
        gm("v", 14, xr(1,0), xr(1,1))
        gm("v", 15, xr(2,0), xr(2,1))
        gm("v", 7, xr(3,0), xr(3,1))
        gm("v", 8, kxr(5), f"v_mov_b64 {vr(ONES+2,2)}, {vr(ONES,2)}")
        gm("v", 9, kxr(6), "s_waitcnt lgkmcnt(6)")
        sw = [f"v_permlane32_swap_b32 v{VV+k}, v{VV+2+k}" for k in range(2)]
        sfill = {
          0: [kxr(7), wor(2, 0)],
          1: ["s_waitcnt lgkmcnt(4)", cvt(VV+2, AV, AV+1), cvt(VV+3, AV+2, AV+3)],
          2: [ev],
          3: [sw[0]], 4: [sw[1]],
          5: [ex(SM)], 6: [ex(SM+1)], 7: ["s_waitcnt lgkmcnt(1)", ex(SM+2)], 8: [ex(SM+3)],
          9: [ex(SX0)], 10: [ex(SX0+1)], 11: [ex(SX0+2), ex(SX0+3)],
        }
        n = 0
        for D, A_, C0 in ((SM, xb, None), (SX0, lambda b: vr(KX+4*b,4), "0"), (SX1, lambda b: vr(KX+16+4*b,4), "0")):
            for b in range(4):
                mf(D, A_(b), xb(b), C0 if (b == 0 and C0) else vr(D,4))
                stamp(f"S{n}", 9)
                for x in sfill.get(n, []): g(x)
                n += 1
        stamp("Sissued", 3)
        g(cvt(PM, SM, SM+1)); g(cvt(PM+1, SM+2, SM+3))
        g(cvt(PX, SX0, SX0+1)); g(cvt(PX+1, SX0+2, SX0+3))
        mf(LL, vr(ONES,2), vr(PM,2), 0, m16); g(ex(SX1))
        mf(O0, vr(VV,2), vr(PM,2), 0, m16); g(ex(SX1+1))
        mf(O1, vr(VV+2,2), vr(PM,2), 0, m16); g(ex(SX1+2))
        g(ex(SX1+3))
        g(cvt(PX+2, SX1, SX1+1)); g(cvt(PX+3, SX1+2, SX1+3))
        g(f"s_waitcnt vmcnt({nyoung})")
        g(f"v_mov_b64 {vr(AQ,2)}, 0")
        mf(LL, vr(ONES,4), vr(PX,4), vr(LL,4)); g(wor(2, 1)); g(wor(3, 0))
        mf(O0, vr(V,4), vr(PX,4), vr(O0,4)); g(wor(3, 1)); g(wor(2, 2))
        mf(O1, vr(V+4,4), vr(PX,4), vr(O1,4))
        stamp("PV", 3)
        g(f"v_rcp_f32 v{RC}, v{LL}")
        g(f"v_mov_b64 {vr(AQ+2,2)}, 0")
        g(f"v_mul_f32 v{O0}, v{RC}, v{O0}")
        g(f"v_mov_b32_dpp v{RC}, v{RC} row_ror:8 row_mask:0xf bank_mask:0xc")
        for k in range(1, 4): g(f"v_mul_f32 v{O0+k}, v{RC}, v{O0+k}")
        for k in range(4): g(f"v_mul_f32_dpp v{O0+k}, v{O1+k}, v{RC} row_ror:8 row_mask:0xf bank_mask:0xc")
        g(cvt(O0, O0, O0+1)); g(cvt(O0+1, O0+2, O0+3))
        g(f"ds_write_b64 v{vOwr}, {vr(O0,2)} offset:{L_OB}")
        stamp("owr")
        g(f"v_subrev_u32 v{RC}, {(127-24) << 23}, v{RC}")
        g(f"v_cmp_le_u32 vcc, s{sRange}, v{RC}")
        post_owr()
        g(f"v_xor_b32 v{vKrd}, 8192, v{vKrd}")
        g("s_cbranch_vccnz R_slow")
        g(f"{N}_slowret:")
        HS = o.hint and w == (o.hbw if o.hb else 3); HP = o.hint and w == o.hw
        if HS: g(f"v_bfe_u32 v{V}, v{vKrd}, 4, 5"); g(f"v_lshlrev_b32 v{V}, 6, v{V}"); g(f"v_mov_b32 v{V+1}, -1")
        if HP: g(f"s_mov_b64 s[{sHv}:{sHv+1}], 0")
        nprobe = [0]
        def probe():
            if not HP or nprobe[0] >= o.hint: return ""
            nprobe[0] += 1
            return f"s_load_dwordx8 s[{sHv}:{sHv+7}], s[{sHp}:{sHp+1}], {128*(nprobe[0]-1)}"
        smf(OA[0], vr(O0,4), wfrag("o",0,0))
        g("s_waitcnt lgkmcnt(0)")
        g("s_barrier")
        stamp("B3", 2)
        for r in range(1, 4): g(f"ds_read_b128 {vr(OF[r],4)}, v{vMrd} offset:{L_OB + 512*(w ^ r)}")
        hst = [f"s_mov_b64 exec, {(1 << (2*o.hint)) - 1}", f"buffer_store_byte v{V+1}, v{V}, {W}, s{sHs} offen", "s_mov_b64 exec, -1"]
        smf(OA[1], vr(O0,4), wfrag("o",0,1))
        if HS and not o.hb and o.hpos == 1:
            for x in hst: g(x)
        smf(OA[2], vr(O0,4), wfrag("o",0,2)); g(wor(2, 3))
        smf(OA[3], vr(O0,4), wfrag("o",0,3)); g(wor(3, 2)); g("s_waitcnt lgkmcnt(4)")
        def wo(r, u): return wfrag("o",1,u) if r == 1 else vr(WOL[(r, u)], 8)
        pa = o.posa[w].split("/"); KA = len(pa)
        vm = []
        def emit(x):
            if x.startswith("buffer_"): vm.append(x)
            g(x)
        def wm(r, u, *fill):
            smf(OA[u], vr(OF[r],4), wo(r, u))
            stamp(f"w{r}{u}", 9)
            if HS and not o.hb and o.hpos == 10*r + u:
                for x in hst: emit(x)
            for key, regs in zip(pa, RS):
                if key == f"w{r}{u}":
                    for x in ld2(regs, sRoff): emit(x)
            for x in fill: emit(x)
        def pst(u): return f"buffer_store_dwordx2 {vr(OA[u],2)}, v{vPst}, {W}, s{sPoff if u < 2 else sPw} offen offset:{2048*(u&1)}"
        def pcv(u): return [cvt(OA[u], OA[u], OA[u]+1), cvt(OA[u]+1, OA[u]+2, OA[u]+3), f"v_and_or_b32 v{OA[u]}, v{OA[u]}, -2, s{sPh}"]
        wm(1, 0, wor(3, 3), "s_waitcnt lgkmcnt(4)")
        wm(2, 0, wor(2, 4), "s_waitcnt lgkmcnt(4)")
        wm(3, 0, wor(2, 5), wor(3, 4))
        wm(1, 1, wor(3, 5), wor(2, 6), "s_waitcnt lgkmcnt(5)", *pcv(0))
        wm(2, 1, pst(0))
        wm(3, 1, wor(2, 7), wor(3, 6))
        wm(1, 2, f"s_add_u32 s{sStep}, s{sStep}, 1", wor(3, 7), "s_waitcnt lgkmcnt(4)")
        wm(2, 2, f"s_and_b32 s{sT0}, s{sStep}, 3", f"s_lshl_b32 s{sT0}, s{sT0}, 13", *pcv(1))
        wm(3, 2, f"s_add_u32 s{sMw}, s{sT0}, s{sMoff}", pst(1))
        wm(1, 3, f"s_add_u32 s{sMr}, s{sT0}, {WS_M}", "s_waitcnt lgkmcnt(0)")
        pa_probe = (lambda: "") if o.hb else probe
        wm(2, 3, pa_probe(), *pcv(2))
        wm(3, 3, pst(2))
        g(pa_probe())
        sel = [f"v_mov_b32 v{DD}, 0x3f80", f"v_cndmask_b32 v{DD}, v{DD}, 1.0, s[{sMaskOdd}:{sMaskOdd+1}]"]
        sel += [f"v_cndmask_b32 v{SEL+d}, 0, v{DD}, s[{sMaskD+2*d}:{sMaskD+2*d+1}]" for d in range(4)]
        for x in sel[:4]: g(x)
        for x in pcv(3): g(x)
        g(pa_probe())
        for key, regs in zip(pa, RS):
            if key == "b3":
                for x in ld2(regs, sRoff): emit(x)
        emit(pst(3))
        stamp("pst")
        pre = sel[4:] + [f"v_lshrrev_b32 v{CK+2}, 6, v{vKrd}", f"v_xnor_b32 v{CK+2}, s{sStep}, v{CK+2}"] + (zacc() + wq0())[:14-nlate]
        def hspin():
            while nprobe[0] < o.hint + o.hextra:
                x = probe()
                if not x: nprobe[0] += 1
                g(x)
                g(f"s_and_b64 s[{sT0}:{sT1}], s[{sHv}:{sHv+1}], s[{sHv+2}:{sHv+3}]")
                g(f"s_and_b64 s[{sT2}:{sT3}], s[{sHv+4}:{sHv+5}], s[{sHv+6}:{sHv+7}]")
                g(f"s_nand_b64 s[{sT0}:{sT1}], s[{sT0}:{sT1}], s[{sT2}:{sT3}]")
                g(f"s_cbranch_scc0 {N}_top")
        if o.hint and not o.hb:
            if HP:
                while nprobe[0] < o.hint + o.hextra:
                    x = probe()
                    if not x: nprobe[0] += 1
                    g(x)
                    g(f"s_and_b64 s[{sT0}:{sT1}], s[{sHv}:{sHv+1}], s[{sHv+2}:{sHv+3}]")
                    g(f"s_and_b64 s[{sT2}:{sT3}], s[{sHv+4}:{sHv+5}], s[{sHv+6}:{sHv+7}]")
                    g(f"s_nand_b64 s[{sT0}:{sT1}], s[{sT0}:{sT1}], s[{sT2}:{sT3}]")
                    g(f"s_cbranch_scc0 {N}_hint")
                g(f"{N}_hint:")
            else:
                while len(pre) > 8 - min(nlate, 8) and not pre[0].startswith("ds_"): g(pre.pop(0))
            g("s_barrier")
            stamp("hint")
        while len(pre) < max(int(key[1:].split("v")[0]) if key[0] == "p" else 0 for key in pa) + o.fa[w]: pre.append(FILL)
        for k in range(len(pre) + 1):
            for key, regs in zip(pa, RS):
                if key[0] == "p" and int(key[1:].split("v")[0]) == k:
                    if "v" in key:
                        j = vm.index(pst(int(key.split("v")[1])))
                        g(f"s_waitcnt vmcnt({len(vm) - 1 - j})")
                    if regs is RS[0]: stamp("rgo")
                    for x in ld2(regs, sRoff): emit(x)
            if k < len(pre): g(pre[k])
        if HS and o.hb:
            g(f"s_waitcnt vmcnt({len(vm) - 1 - vm.index(pst(o.hbv))})")
            for x in hst: emit(x)
        nR = [len(vm) - 1 - vm.index(ld2(RS[j], sRoff)[1]) + 2*j for j in range(KA)]
        for j in range(KA):
            check_part(RS[j], nR[j])
            if j < KA - 1:
                g(f"s_cbranch_vccz {N}_redok")
                issue2(RS[j], sRoff)
                if o.stamps: g(f"s_add_u32 s{sFailA}, s{sFailA}, 1")
        g(f"s_cbranch_vccnz {N}_red2")
        g(f"{N}_redok:")
        stamp("rok", 9)
        if o.hb and o.hbpre: g(probe())
        for sh in (8, 4):
            for k in range(2): g(f"v_add_f32_dpp v{DD+k}, v{DD+k}, v{DD+k} row_ror:{sh} row_mask:0xf bank_mask:0xf")
        g(cvt(DD, DD, DD+1))
        g(f"buffer_store_dword v{DD}, v{vMst}, {W}, s{sMw} offen")
        stamp("pub")
        if o.hb and HP: hspin()
        g(f"s_branch {N}_top")
        g(f"{N}_red2:")
        for j in range(KA):
            issue2(RS[(j-1) % KA], sRoff)
            g(f"s_add_u32 s{sFailA}, s{sFailA}, 1")
            check_part(RS[j], 2*(KA-1))
            g(f"s_cbranch_vccz {N}_redok")
        g(f"s_cmp_lt_u32 s{sFailA}, 0x40000")
        g(f"s_cbranch_scc1 {N}_red2")
        g("s_endpgm")
        g(f"{N}_pollB:")
        issue2(PS[KP-1], sMr)
        g(f"s_sub_u32 s{sBudget}, s{sBudget}, 1")
        g(f"s_cmp_gt_i32 s{sBudget}, 0")
        g(f"s_cbranch_scc1 {N}_poll")
        g("s_endpgm")
    for w in range(4): loop(w)
    if o.stamps:
        while len(o.stamp_names) < 13: o.stamp_names.append("-")
        o.stamp_names.append("Mok")
    g("R_kvwait:")
    g(f"v_bfe_u32 v{CK}, v{vKrd}, 4, 2\nv_lshlrev_b32 v{CK}, 2, v{CK}\nv_mov_b32 v{CK+1}, s{sReq}")
    roles.spin(g, "R_kv", CK, f"s{sFlB}", CK+1, CK+3)
    g("s_branch R_kvok")
    g("R_slow:")
    g(f"s_cmp_eq_u32 s{sStep}, {o.nsteps-1}")
    g("s_cbranch_scc1 R_done")
    g("s_waitcnt lgkmcnt(0)")
    g(f"v_xor_b32 v{vKrd}, 8192, v{vKrd}")
    for n in range(8): g(kxr(n))
    g(f"v_xor_b32 v{vKrd}, 8192, v{vKrd}")
    g("s_waitcnt lgkmcnt(0)")
    for b in range(4): g(xr(b, 0)); g(xr(b, 1))
    for k in range(4): g(f"v_mov_b32 v{SM+k}, v{vMask}")
    g("s_waitcnt lgkmcnt(0)")
    for D, A_, C0 in ((SX0, lambda b: vr(KX+4*b,4), "0"), (SX1, lambda b: vr(KX+16+4*b,4), "0"), (SM, xb, None)):
        for b in range(4): mf(D, A_(b), xb(b), C0 if (b == 0 and C0) else vr(D,4))
    g(wor(2, 2))
    sregs = [SX0+j for j in range(4)] + [SX1+j for j in range(4)] + [SM+j for j in range(4)]
    mx, mt = O0, O0+1
    g(f"v_max3_f32 v{mx}, v{sregs[0]}, v{sregs[1]}, v{sregs[2]}")
    for k in range(3, 11, 2): g(f"v_max3_f32 v{mx}, v{mx}, v{sregs[k]}, v{sregs[k+1]}")
    g(f"v_max_f32 v{mx}, v{mx}, v{sregs[11]}")
    for sw in ("v_permlane32_swap_b32", "v_permlane16_swap_b32"):
        g(f"v_mov_b32 v{mt}, v{mx}")
        g(f"{sw} v{mx}, v{mt}")
        g(f"v_max_f32 v{mx}, v{mx}, v{mt}")
    for s_ in sregs: g(f"v_sub_f32 v{s_}, v{s_}, v{mx}")
    for s_ in sregs: g(ex(s_))
    for k in range(4): g(cvt(PX+k, sregs[2*k], sregs[2*k+1]))
    for k in range(2): g(cvt(PM+k, sregs[8+2*k], sregs[9+2*k]))
    mf(LL, vr(ONES,4), vr(PX,4), 0); mf(O0, vr(V,4), vr(PX,4), 0); mf(O1, vr(V+4,4), vr(PX,4), 0)
    mf(LL, vr(ONES,2), vr(PM,2), vr(LL,4), m16); mf(O0, vr(VV,2), vr(PM,2), vr(O0,4), m16); mf(O1, vr(VV+2,2), vr(PM,2), vr(O1,4), m16)
    g(f"v_rcp_f32 v{RC}, v{LL}")
    g(f"v_mov_b32_dpp v{RC}, v{RC} row_ror:8 row_mask:0xf bank_mask:0xc")
    for k in range(4): g(f"v_mul_f32 v{O0+k}, v{RC}, v{O0+k}")
    for k in range(4): g(f"v_mul_f32_dpp v{O0+k}, v{O1+k}, v{RC} row_ror:8 row_mask:0xf bank_mask:0xc")
    g(cvt(O0, O0, O0+1)); g(cvt(O0+1, O0+2, O0+3))
    g(f"ds_write_b64 v{vOwr}, {vr(O0,2)} offset:{L_OB}")
    post_owr()
    for k in range(0, 4, 2): g(f"v_mov_b64 {vr(AQ+k,2)}, 0")
    g("s_waitcnt lgkmcnt(0)")
    for w in range(3): g(f"s_cmp_eq_u32 s{sW}, {w}\ns_cbranch_scc1 R{w}_slowret")
    g("s_branch R3_slowret")
    g("R_done:")
    g("s_waitcnt vmcnt(0) lgkmcnt(0)")
    g("s_barrier")
    roles.set_flag(g, sFlE, o.nsteps, vJ, one=True)

def gen(o):
    g = G()
    R = roles
    g(f"s_cmp_ge_u32 s2, 256")
    g("s_cbranch_scc0 K_go")
    g("s_endpgm")
    g("K_go:")
    if o.prof or o.ronly or o.diag:
        g("s_memrealtime s[96:97]")
        g("s_memtime s[100:101]")
    srd(g, S_WS, 96, WS_SIZE); srd(g, S_DBG, 88, 256)
    g(f"""v_lshrrev_b32 v1, 6, v0
    s_mov_b32 s{sBudget}, 0x40000
    v_readfirstlane_b32 s{sW}, v1
    s_getreg_b32 s3, hwreg(HW_REG_XCC_ID)
    s_and_b32 s3, s3, 7
    s_mul_i32 s20, s3, 24
    s_add_u32 s20, s20, 56
    s_cmp_eq_u32 s3, 0
    s_cselect_b32 s20, 0, s20
    v_mov_b32 v2, 1
    v_mov_b32 v3, 0
    s_cmp_eq_u32 s{sW}, 0
    s_waitcnt lgkmcnt(0)
    s_cbranch_scc0 K_tick
    s_mov_b64 exec, 1
    buffer_atomic_add v2, off, s[{S_DBG}:{S_DBG+3}], s20 sc0
    s_waitcnt vmcnt(0)
    ds_write_b32 v3, v2
    s_waitcnt lgkmcnt(0)
    s_mov_b64 exec, -1
    K_tick:
    s_barrier
    ds_read_b32 v2, v3
    s_waitcnt lgkmcnt(0)
    v_readfirstlane_b32 s{sH}, v2
    s_cmp_lt_u32 s{sH}, 32
    s_cbranch_scc1 K_role
    s_endpgm
    K_role:""")
    if o.prof == 2:
        g(f"""s_lshl_b32 s20, s3, 5
        s_add_u32 s20, s20, s{sH}
        s_mov_b32 s97, 228
        s_cmp_eq_u32 s20, 159
        s_cselect_b32 s97, 36, s97
        s_cmp_eq_u32 s20, 0
        s_cselect_b32 s97, 8, s97
        s_cmp_eq_u32 s{sW}, 0
        s_cselect_b32 s97, s97, 228
        v_mov_b32 v254, s96
        s_cmp_lt_u32 s97, 64
        s_cselect_b64 exec, 1, 0
        buffer_store_dword v254, off, s[{S_DBG}:{S_DBG+3}], s97 sc1
        s_mov_b64 exec, -1""")
    elif o.prof:
        g(f"""s_lshl_b32 s20, s3, 5
        s_add_u32 s20, s20, s{sH}
        s_lshl_b32 s20, s20, 5
        v_mov_b32 v254, s96
        s_add_u32 s97, s20, {WS_DBG}
        s_mov_b64 exec, 1
        buffer_store_dword v254, off, {W}, s97
        s_mov_b64 exec, -1""")
    g(f"""s_cmp_eq_u32 s3, 0
    s_cbranch_scc1 R_entry""")
    if o.ronly:
        g("s_endpgm")
    else:
        g(f"""s_sub_u32 s3, s3, 1
        s_lshl_b32 s3, s3, 5
        s_add_u32 s{R.sK}, s3, s{sH}
        v_and_b32 v{R.vL}, 63, v0""")
        R.gemm_setup(g, o, 80)
        R.gen_gemm(g, o)
        g(f"""s_cmp_eq_u32 s{R.sPhase}, 3
        s_cbranch_scc0 W_next
        s_endpgm
        W_next:
        s_cmp_ge_u32 s{R.sK}, 192
        s_cbranch_scc1 FA_entry""")
        R.gen_att(g, o)
        g(f"s_cmp_ge_u32 s{R.sK}, 128\ns_cbranch_scc1 W_a3")
        R.gen_fg(g, o)
        R.gen_fa(g, o)
    gen_R(g, o)
    R.tstamp(g, o, 6)
    if o.prof == 3:
        g("s_mov_b64 exec, 1\ns_add_u32 s97, s97, 65536")
        for k in range(6): g(f"v_mov_b32 v1, s{68+2*k}\nbuffer_store_dword v1, off, {W}, s97 offset:{4*k}")
    if o.diag:
        if o.diag == 3: g("s_memrealtime s[100:101]")
        if o.diag == 1: g("s_mov_b32 s100, s96")
        g(f"""s_waitcnt lgkmcnt(0)
        s_add_u32 s100, s100, 20000
        D_spin:
        s_memrealtime s[98:99]
        s_waitcnt lgkmcnt(0)
        s_sub_u32 s98, s98, s100
        s_cmp_lt_i32 s98, 0
        s_cbranch_scc1 D_spin""")
    if o.ronly:
        g(f"""s_memrealtime s[98:99]
        s_memtime s[94:95]
        s_waitcnt lgkmcnt(0)
        s_sub_u32 s98, s98, s96
        s_sub_u32 s94, s94, s100
        v_mov_b32 v3, s94
        v_mov_b32 v1, s98
        v_mov_b32 v2, 0
        s_lshl_b32 s20, s{sH}, 2
        s_add_u32 s20, s20, {WS_DBG + 1000*1024}
        buffer_store_dword v1, v2, s[{S_WS}:{S_WS+3}], s20 offen
        buffer_store_dword v3, v2, s[{S_WS}:{S_WS+3}], s20 offen offset:128
        s_waitcnt vmcnt(0)""")
        if o.stamps:
            g(f"""s_memrealtime s[98:99]
            s_waitcnt lgkmcnt(0)
            s_add_u32 s96, s98, 1100
            s_and_b32 s96, s96, 0xfffffc00
            s_mov_b32 s21, 0
            s_mov_b32 s22, 0
            C_spin:
            s_memrealtime s[98:99]
            s_memtime s[94:95]
            s_waitcnt lgkmcnt(0)
            s_sub_u32 s98, s98, s96
            s_cmp_lt_i32 s98, 0
            s_cbranch_scc1 C_spin
            s_lshr_b32 s94, s94, 3
            s_add_u32 s21, s21, s94
            s_add_u32 s96, s96, 52
            s_add_u32 s22, s22, 1
            s_cmp_lt_u32 s22, 8
            s_cbranch_scc1 C_spin
            v_mov_b32 v3, s21
            v_mov_b32 v1, s96
            buffer_store_dword v1, v2, s[{S_WS}:{S_WS+3}], s20 offen offset:256
            buffer_store_dword v3, v2, s[{S_WS}:{S_WS+3}], s20 offen offset:384
            s_waitcnt vmcnt(0)""")
    g("s_endpgm")
    body = g.text()
    if o.stamps: body = ("; RT\n" if o.rt else "") + "; STAMPS " + " ".join(o.stamp_names) + "\n" + body
    head = open("cdna_kernels/" + NAME + ".s.ref").read().split("; Override")[0]
    return (head + f"; @launch grid=(256,1,1) block=(256,1,1) lds={LDS_BYTES}\n"
      f'.amdgcn_target "amdgcn-amd-amdhsa--gfx950"\n.text\n.globl {NAME}_kernel\n.p2align 8\n.type {NAME}_kernel,@function\n{NAME}_kernel:\n'
      + body +
      f'.section .rodata,"a"\n.p2align 6\n.amdhsa_kernel {NAME}_kernel\n  .amdhsa_next_free_vgpr 512\n  .amdhsa_next_free_sgpr 102\n  .amdhsa_accum_offset 256\n'
      '  .amdhsa_group_segment_fixed_size 0\n  .amdhsa_kernarg_size 104\n  .amdhsa_user_sgpr_count 2\n  .amdhsa_user_sgpr_kernarg_segment_ptr 1\n'
      '  .amdhsa_system_sgpr_workgroup_id_x 1\n  .amdhsa_float_denorm_mode_32 3\n.end_amdhsa_kernel\n')

if __name__ == "__main__":
    o = Opt()
    out = sys.argv[1]
    for a in sys.argv[2:]:
        k, v = a.split("=")
        setattr(o, k, v if k == 'nt' else v.split(',') if k in ('sel', 'posa', 'posm') else [int(x) for x in v.split(',')] if ',' in v else int(v))
    open(out, "w").write(gen(o))
```

```python
import sys, math
from asmgen import *

from cfg import *
import roles

class Opt:
    nsteps = 64
    prof = 0
    wpf = 0
    fgsc = 0
    ofirst = 1
    nt = ''
    gspread = 1
    xpf = 1
    diag = 0
    ronly = 0
    dbg_m = False
    stamps = False
    rdelay = 20
    force_slow = 0
    nofar = 0
    noexp = 0
    pdelay = [12, 12, 12, 12]
    lateb1 = [0, 0, 0, 0]
    posa = ['p10v1', 'p10v2', 'p18v2/p18v3', 'p18v2/p18v3']
    posm = ['40/70', '30/60', '20/50', '20/50']
    late = [0, 0, 0, 0]
    hint = 0
    opt = 0
    warm = 0
    hb = 0
    hbw = 3
    hbv = 3
    hbpre = 2
    early = [0, 0, 0, 0]
    fa = [0, 0, 0, 0]
    fb = [0, 0, 0, 0]
    b0 = 0
    hpos = 11
    hw = 0
    hextra = 5
    hd = [0, 4, 12, 24]
    nofark = 0
    nofarv = 0
    pgap = 0
    sel = []
    rgap = 0
    uspread = 1
    rt = 0
    noreset = 0
    rs = 8192
    rwait = 2

def gen_R(g, o):
    vQ, vIdx, vMrd, vXwr, vXrd, vKrd, vOwr, vWo, vJ, vPst, vMst, vMask = range(12)
    V = 12; AQ, AK, AV = 20, 24, 28; KX = 32; MF = 64
    def M(t): return MF + 4*t
    T = MF
    TMP1 = MF + 32
    perm = [("q",1),("q",2),("q",3),("k",0),("k",1),("k",2),("v",0),("v",1),("v",2),("v",3),("o",0),("o",1)]
    loc = {key: (("a", 32*n) if n < 8 else ("v", 128 + 32*(n-8))) for n, key in enumerate(perm)}
    ploc = dict(loc); ploc[("q",0)] = ("v", KX); ploc[("k",3)] = ("v", TMP1)
    slot = {("q",0): 0, ("k",3): 1, ("o",2): 2, ("o",3): 3}
    order = [(m, c) for m in ("oqkv" if o.ofirst else "qkvo") for c in range(4)]
    def cbase(n):
        if not o.ofirst or n < 4: return L_W + (n & 3) * 32768
        return (0, L_W, L_W + 32768)[(n - 4) % 3]
    def wfrag(mat, r, f):
        k, b = loc[(mat, r)]
        return vr(b + 8*f, 8, k)
    sT0, sT1, sT2, sT3 = 20, 21, 22, 23
    sPw, sPh, sExw, sMr, sMw, sMz, sKV, sEx, sRange, sM0k = 24, 25, 26, 27, 28, 29, 30, 31, 32, 33
    sO1, sO2, sO3, sMoff = 34, 35, 36, 37
    sMaskOdd, sMaskD, sMaskLo8 = 38, 40, 48
    sC, sPoff, sRoff = 50, 51, 3
    sVc, sFlB, sKn, sVn, sFailA, sFlE, sReq, sDump = 52, 53, 54, 55, 56, 57, 58, 59
    sCu = 35
    sHs, sHp, sHv = 34, 8, 60
    S_Q, S_K, S_V, S_O = 52, 56, 60, 64
    sSt = 68
    W = f"s[{S_WS}:{S_WS+3}]"
    g("R_entry:")
    if o.diag == 4: g("s_memrealtime s[100:101]")
    if o.prof == 3: g("s_memrealtime s[68:69]")
    srd(g, S_Q, 40, 4*MB_); srd(g, S_K, 48, 4*MB_); srd(g, S_V, 56, 4*MB_); srd(g, S_O, 64, 4*MB_)
    srd(g, S_A, 32, 8192)
    g(f"""v_and_b32 v{T}, 63, v0
    v_and_b32 v{T+1}, 15, v0
    v_lshrrev_b32 v{T+2}, 4, v{T}
    v_lshrrev_b32 v{T+3}, 2, v{T+1}
    v_and_b32 v{T+4}, 3, v0""")
    l, i, gg, a, c = T, T+1, T+2, T+3, T+4
    vDq, vDo, vTq, vTo, t0, t1, t2, vTT = T+5, T+6, T+7, T+8, T+9, T+10, T+11, T+16
    g(f"""s_and_b32 s{sT0}, s{sW}, 1
    s_lshl_b32 s{sT0}, s{sT0}, 3
    v_and_b32 v{t0}, 1, v{gg}
    v_lshlrev_b32 v{t0}, 2, v{t0}
    v_or_b32 v{t0}, s{sT0}, v{t0}
    v_xor_b32 v{t0}, v{t0}, v{i}
    v_lshlrev_b32 v{t0}, 4, v{t0}
    v_lshl_add_u32 v{vDq}, v{gg}, 13, v{t0}
    s_lshl_b32 s{sT0}, s{sW}, 15
    v_add_u32 v{vDq}, s{sT0}, v{vDq}""")
    g(f"""s_and_b32 s{sT0}, s{sW}, 1
    s_lshr_b32 s{sT1}, s{sW}, 1
    s_lshl_b32 s{sT1}, s{sT1}, 4
    s_add_u32 s{sT3}, s{sT0}, s{sT1}
    s_lshl_b32 s{sT3}, s{sT3}, 10
    s_lshl_b32 s{sT0}, s{sW}, 2
    v_xor_b32 v{vDo}, s{sT0}, v{l}
    v_lshlrev_b32 v{vDo}, 4, v{vDo}
    v_add_u32 v{vDo}, s{sT3}, v{vDo}
    s_and_b32 s{sT0}, s{sW}, 1
    s_lshr_b32 s{sT1}, s{sW}, 1
    s_lshl_b32 s{sT1}, s{sT1}, 2
    s_add_u32 s{sT3}, s{sT0}, s{sT1}
    s_lshl_b32 s{sT3}, s{sT3}, 10""")
    g("s_waitcnt lgkmcnt(0)")
    def dma_chunk(n):
        mat, cc = order[n]
        base = cbase(n)
        nt = " nt" if mat in o.nt else ""
        if mat != "o":
            S = {"q": S_Q, "k": S_K, "v": S_V}[mat]
            g(f"s_lshl_b32 s{sT0}, s{sH}, 8")
            g(f"s_add_u32 s{sT0}, s{sT0}, {(64*(cc>>1) + 16*(cc&1))*8192}")
            g(f"s_lshl_b32 s{sT1}, s{sW}, 10")
            g(f"s_add_u32 s{sT1}, s{sT1}, {base}")
            for mm in range(8):
                g(f"s_mov_b32 m0, s{sT1}")
                g(f"s_add_u32 s{sT1}, s{sT1}, 4096")
                g(f"buffer_load_dwordx4 v{vDq}, s[{S}:{S+3}], s{sT0} offen{nt} lds")
                g(f"s_add_u32 s{sT0}, s{sT0}, {(32 if mm % 2 == 0 else 96)*8192}")
        else:
            g(f"s_lshl_b32 s{sT0}, s{sH}, 17")
            g(f"s_add_u32 s{sT0}, s{sT0}, {(8*(cc>>1) + 2*(cc&1))*1024}")
            g(f"s_add_u32 s{sT1}, s{sT3}, {base}")
            for mm in range(8):
                g(f"s_mov_b32 m0, s{sT1}")
                g(f"s_add_u32 s{sT1}, s{sT1}, {(2 if mm % 2 == 0 else 6)*1024}")
                g(f"buffer_load_dwordx4 v{vDo}, s[{S_O}:{S_O+3}], s{sT0} offen{nt} lds")
                g(f"s_add_u32 s{sT0}, s{sT0}, {(4 if mm % 2 == 0 else 28)*1024}")
    g(f"""v_mov_b64 {vr(T+28,2)}, 0
    v_mov_b64 {vr(T+30,2)}, 0
    v_lshlrev_b32 v{t0}, 4, v{l}
    s_lshl_b32 s{sT0}, s{sH}, 8
    s_add_u32 s{sT0}, s{sT0}, {WS_FL + (65536 if o.ronly else 0)}
    s_cmp_eq_u32 s{sW}, 0
    s_cselect_b64 exec, 0xffff, 0
    buffer_store_dwordx4 {vr(T+28,4)}, v{t0}, {W}, s{sT0} offen sc1
    s_mov_b64 exec, -1""")
    dma_chunk(0)
    ih = T+17; i7 = T+18; gh = T+19; gl = T+20
    g(f"""v_lshrrev_b32 v{ih}, 3, v{i}
    v_and_b32 v{i7}, 7, v{i}
    v_lshrrev_b32 v{gh}, 1, v{gg}
    v_and_b32 v{gl}, 1, v{gg}
    v_lshlrev_b32 v{vKrd}, 4, v{l}
    v_lshlrev_b32 v{t0}, 4, v{i7}
    v_lshl_add_u32 v{vMrd}, v{gg}, 7, v{t0}
    v_lshl_add_u32 v{vQ}, v{ih}, 9, v{vMrd}
    s_lshl_b32 s{sT0}, s{sW}, 11
    v_add_u32 v{vQ}, s{sT0}, v{vQ}
    v_cmp_gt_u32 s[{sMaskLo8}:{sMaskLo8+1}], 8, v{i}
    v_mov_b32 v{t0}, 0xeeeeeeee
    v_mov_b32 v{t1}, 0x44444444
    v_cndmask_b32 v{vIdx}, v{t0}, v{t1}, s[{sMaskLo8}:{sMaskLo8+1}]
    v_lshl_add_u32 v{vOwr}, v{ih}, 3, v{vMrd}
    s_lshl_b32 s{sT0}, s{sW}, 9
    v_add_u32 v{vOwr}, s{sT0}, v{vOwr}
    v_lshl_add_u32 v{vXwr}, v{gh}, 4, v{i}
    v_lshlrev_b32 v{vXwr}, 3, v{vXwr}
    v_mul_u32_u24 v{t0}, {XPL}, v{gl}
    v_add_u32 v{vXwr}, v{vXwr}, v{t0}
    s_lshl_b32 s{sT0}, s{sW}, 8
    v_add_u32 v{vXwr}, s{sT0}, v{vXwr}
    v_mul_u32_u24 v{vPst}, {4*o.rs if o.uspread else o.rs}, v{gh}
    v_mul_u32_u24 v{t0}, {2*o.rs if o.uspread else 4096}, v{ih}
    v_add_u32 v{vPst}, v{t0}, v{vPst}
    v_mul_u32_u24 v{t0}, {o.rs if o.uspread else 2048}, v{gl}
    v_add_u32 v{vPst}, v{t0}, v{vPst}
    v_lshl_add_u32 v{vPst}, v{i7}, 3, v{vPst}
    s_mul_i32 s{sT0}, s{sW}, {8*o.rs}
    v_add_u32 v{vPst}, s{sT0}, v{vPst}
    s_mul_i32 s{sRoff}, s{sH}, {o.rs}
    v_lshlrev_b32 v{vMst}, 4, v{gg}
    v_lshl_add_u32 v{vMst}, v{c}, 2, v{vMst}
    s_lshl_b32 s{sT0}, s{sW}, 11
    v_add_u32 v{vMst}, s{sT0}, v{vMst}
    v_lshl_add_u32 v{vXrd}, v{gg}, 2, v{a}
    v_lshlrev_b32 v{vXrd}, 3, v{vXrd}
    v_mul_u32_u24 v{t0}, {XPL}, v{c}
    v_add_u32 v{vXrd}, v{vXrd}, v{t0}
    s_lshl_b32 s{sT0}, s{sW}, 13
    s_add_u32 s{sT0}, s{sT0}, {L_W}
    v_add_u32 v{vWo}, s{sT0}, v{vKrd}
    v_mov_b32 v{t0}, 0xf149f2ca
    v_cmp_gt_u32 vcc, 2, v{gg}
    v_cndmask_b32 v{vMask}, 0, v{t0}, vcc
    v_and_b32 v{t0}, 1, v{a}
    v_cmp_eq_u32 s[{sMaskOdd}:{sMaskOdd+1}], 1, v{t0}
    v_lshrrev_b32 v{t0}, 1, v{a}
    v_lshl_add_u32 v{t0}, v{c}, 1, v{t0}""")
    for d in range(4):
        g(f"v_cmp_eq_u32 s[{sMaskD+2*d}:{sMaskD+2*d+1}], {d}, v{t0}")
    for r, s_ in ((1, sO1), (2, sO2), (3, sO3)):
        g(f"s_add_u32 s{s_}, s{sW}, {r}\ns_and_b32 s{s_}, s{s_}, 3\ns_lshl_b32 s{s_}, s{s_}, 9")
    g(f"s_mov_b32 s{sC}, {f32(CSCALE)}")
    g(f"s_lshl_b32 s{sPoff}, s{sH}, 6")
    g(f"s_lshl_b32 s{sMoff}, s{sH}, 6")
    g(f"""v_and_b32 v{t0}, 1, v{a}
    v_lshl_add_u32 v{t2}, v{gl}, 1, v{t0}
    v_lshrrev_b32 v{vTT}, 1, v{a}
    v_lshlrev_b32 v{vTq}, 5, v{vTT}
    v_lshl_add_u32 v{vTq}, v{c}, 3, v{vTq}
    v_xor_b32 v{t2}, s{sW}, v{t2}
    v_lshl_add_u32 v{vTq}, v{t2}, 6, v{vTq}
    v_lshl_add_u32 v{vTo}, v{t0}, 10, v{vTq}
    v_lshl_add_u32 v{vTq}, v{t0}, 8, v{vTq}
    v_lshl_add_u32 v{vTq}, v{gg}, 10, v{vTq}
    v_lshl_add_u32 v{vTo}, v{gl}, 12, v{vTo}
    v_lshl_add_u32 v{vTo}, v{gh}, 11, v{vTo}
    s_lshl_b32 s{sT0}, s{sW}, 13
    v_add_u32 v{vTo}, s{sT0}, v{vTo}""")
    g(f"""v_mov_b32 v{t1}, 1
    s_cmp_eq_u32 s{sW}, 0
    s_cselect_b64 exec, 1, 0
    s_waitcnt vmcnt(8)
    buffer_atomic_add v{t1}, off, s[{S_DBG}:{S_DBG+3}], 0 offset:4
    s_mov_b64 exec, -1""")
    SN = T+12
    g(f"v_mov_b32 v{SN}, -1")
    g(f"s_add_u32 s{sT0}, s{sRoff}, {WS_PART}")
    for k in range(4): g(f"v_not_b32 v{T+24+k}, v{a}")
    for hf in range(2):
        g(f"buffer_store_dwordx4 {vr(T+24,4)}, v{vQ}, {W}, s{sT0} offen offset:{1024*hf}")
    g(f"s_add_u32 s{sT0}, s{sMoff}, {WS_M}")
    for sl in range(4):
        g(f"buffer_store_dword v{SN}, v{vMst}, {W}, s{sT0} offen")
        g(f"s_add_u32 s{sT0}, s{sT0}, 8192")
    if o.hint: g(f"""v_mov_b32 v{t1}, 0
    v_mov_b32 v{t2}, 0
    v_lshlrev_b32 v{t0}, 3, v{l}
    s_lshl_b32 s{sT0}, s{sH}, 12
    s_lshl_b32 s{sT1}, s{sW}, 10
    s_add_u32 s{sT0}, s{sT0}, s{sT1}
    s_add_u32 s{sT0}, s{sT0}, {WS_HINT}
    buffer_store_dwordx2 {vr(t1,2)}, v{t0}, {W}, s{sT0} offen sc1
    buffer_store_dwordx2 {vr(t1,2)}, v{t0}, {W}, s{sT0} offen offset:512 sc1""")
    g(f"""v_lshl_add_u32 v{t0}, v{ih}, 2, v{gg}
    v_lshlrev_b32 v{t0}, 4, v{t0}
    v_lshl_add_u32 v{t0}, v{i7}, 10, v{t0}
    s_lshl_b32 s{sT0}, s{sW}, 8
    buffer_load_dwordx4 {vr(V,4)}, v{t0}, s[{S_A}:{S_A+3}], s{sT0} offen
    buffer_load_dwordx4 {vr(V+4,4)}, v{t0}, s[{S_A}:{S_A+3}], s{sT0} offen offset:128""")
    LA = 3 if o.ofirst else 4
    for n in range(1, LA): dma_chunk(n)
    g(f"s_add_u32 s{sMoff}, s{sMoff}, {WS_M}\ns_add_u32 s{sRoff}, s{sRoff}, {WS_PART}\ns_add_u32 s{sPoff}, s{sPoff}, {WS_PART}")
    for n in range(16):
        mat, cc = order[n]
        base = cbase(n)
        rem = min(LA - 1, 15 - n) * 8 + (2 if n == 15 else 0)
        g(f"s_waitcnt vmcnt({rem})")
        g("s_barrier")
        if o.diag == 10 + n: g("s_memrealtime s[100:101]")
        if o.prof == 3 and n in (0, 3, 7, 11, 15): g(f"s_memrealtime s[{68+2*(1+(n+1)//4)}:{69+2*(1+(n+1)//4)}]")
        if n == 0:
            g(f"""s_cmp_eq_u32 s{sW}, 0
            s_cbranch_scc0 R_noinit
            v_mov_b32 v{t0}, 8
            v_mov_b32 v{t1}, 1
            s_mov_b64 exec, 1
            buffer_atomic_add v{t1}, v{t0}, s[{S_DBG}:{S_DBG+3}], 0 offen
            s_mov_b64 exec, -1
            R_noinit:""")
        if mat == "o":
            for r in range(4):
                k, b = loc[(mat, r)] if r < 2 else ("v", (KX, TMP1)[r-2])
                if r == 0:
                    g(f"v_mul_u32_u24 v{t0}, {4096+128}, v{vTT}")
                    g(f"v_xor_b32 v{t0}, v{t0}, v{vTo}")
                else:
                    g(f"v_xor_b32 v{t0}, {8192*r}, v{vTo}")
                g(f"v_add_u32 v{t0}, {base}, v{t0}")
                for u in range(4):
                    g(f"ds_read_b64_tr_b16 {vr(b + 8*u + 2*cc, 2, k)}, v{t0} offset:{256*u}")
                if r == 1: g("s_waitcnt lgkmcnt(0)")
        else:
            mm_, hh = cc >> 1, cc & 1
            for r in range(4):
                k, b = ploc[(mat, r)]
                if r == 0: g(f"s_lshl_b32 s{sT0}, s{sW}, 13")
                else: g(f"s_lshl_b32 s{sT0}, s{(sO1,sO2,sO3)[r-1]}, 4")
                g(f"s_add_u32 s{sT0}, s{sT0}, {base}")
                g(f"v_add_u32 v{t0}, s{sT0}, v{vTq}")
                if r == 0:
                    g(f"v_lshl_add_u32 v{t0}, v{vTT}, 12, v{t0}")
                    g(f"v_xor_b32 v{t1}, 4096, v{t0}")
                for x in range(2):
                    for dd in range(2):
                        ad, off = (t0, 4096*x + 512*dd) if r else ((t0, t1)[x], 512*dd)
                        g(f"ds_read_b64_tr_b16 {vr(b + 8*(2*mm_+x) + 4*hh + 2*dd, 2, k)}, v{ad} offset:{off}")
                if r == 1: g("s_waitcnt lgkmcnt(0)")
        g("s_waitcnt lgkmcnt(0)")
        g("s_barrier")
        fa_, fr_, fv_ = AQ, AQ+1, AQ+2
        if n == 9:
            g(f"v_mov_b32 v{fa_}, 8\nv_mov_b32 v{fr_}, 32")
            g(f"buffer_load_dword v{fv_}, v{fa_}, s[{S_DBG}:{S_DBG+3}], 0 offen sc1")
        if n == 12:
            g(f"v_cmp_gt_u32 vcc, v{fr_}, v{fv_}\ns_cbranch_vccz R_init_ok")
            roles.spin(g, "R_init", fa_, 0, fr_, fv_, f"s[{S_DBG}:{S_DBG+3}]")
            g(f"""s_lshl_b32 s{sFlB}, s{sH}, 7
            s_add_u32 s{sFlB}, s{sFlB}, {FL_B + 8}
            s_add_u32 s{sFlE}, s{sFlB}, 24
            v_lshlrev_b32 v{fa_}, 2, v{c}
            v_mov_b32 v{fr_}, 1
            buffer_load_dword v{fv_}, v{fa_}, {W}, s{sFlB} offen sc1""")
        if n == 14:
            g(f"v_cmp_gt_u32 vcc, v{fr_}, v{fv_}\ns_cbranch_vccz R_kv0_ok")
            roles.spin(g, "R_kv0", fa_, f"s{sFlB}", fr_, fv_)
            g(f"""s_lshl_b32 s{sKV}, s{sH}, 13
            s_add_u32 s{sT0}, s{sKV}, {WS_KX}
            s_lshl_b32 s{sM0k}, s{sW}, 11
            s_mov_b32 m0, s{sM0k}
            s_nop 0
            buffer_load_dwordx4 v{vQ}, {W}, s{sT0} offen sc1 lds
            buffer_load_dwordx4 v{vQ}, {W}, s{sT0} offen offset:1024 sc1 lds""")
        if n + LA < 16: dma_chunk(n + LA)
        assert o.ofirst
        wb_ = {3: [(KX, 2), (TMP1, 3)], 14: [(KX, 0)], 15: [(TMP1, 1)]}.get(n, [])
        for src, sl in wb_:
            g(f"v_add_u32 v{t0}, {sl*32768}, v{vWo}")
            for f in range(8):
                g(f"ds_write_b128 v{t0}, {vr(src+4*f,4)} offset:{1024*f}")
            g("s_waitcnt lgkmcnt(0)")
    def lds_w(mat, cc, f, hf):
        return slot[(mat, cc)]*32768 + f*2048 + hf*1024
    roles.tstamp(g, o, 1, t0)
    roles.tstamp(g, o, 2, t0)
    if o.diag == 2: g("s_memrealtime s[100:101]")
    for k in (0, 2): g(f"v_mov_b64 {vr(M(0)+k,2)}, {vr(V+k,2)}\nv_mov_b64 {vr(M(2)+k,2)}, {vr(V+4+k,2)}")
    g(f"""s_mov_b32 s{sStep}, 0
    s_mov_b32 s{sFailA}, 0
    s_mov_b32 s{sMr}, {WS_M}""")
    o.stamp_names = list(o.sel)
    def stamp(name="", lvl=1):
        if (o.stamps >= lvl and not o.sel) or name in o.sel:
            if name not in o.stamp_names: o.stamp_names.append(name)
            n = o.stamp_names.index(name)
            assert n < 13
            g(f"{'s_memrealtime' if o.rt else 's_memtime'} s[{sSt+2*n}:{sSt+2*n+1}]")
    X = M(0); SX1 = M(4); PX = M(5); PM = M(6); O0 = M(7); O1 = M(8); LL = M(9); ONES = M(10); VV = M(11)
    vW2 = PM + 2; RC = PM + 3; E = PX
    WOL = {(2,0): M(12), (3,0): M(14), (2,1): KX, (3,1): KX+8, (2,2): KX+16, (3,2): KX+24, (2,3): M(0), (3,3): M(2)}
    RS = [(M(12), M(13)), (M(14), M(15)), (M(6), M(7))]; SEL = M(9); DD = M(10); CK = M(8)
    PS = [(M(12), M(13)), (M(14), M(15)), (M(10), M(11))]; vPf, vSn = M(9), M(9)+1
    SM, SX0 = AQ, AK
    OA = [AQ, AK, SX1, AV]; OF = [O0, O1, LL, PX]
    def wq0():  return [f"ds_read_b128 {vr(KX+4*f,4)}, v{vWo} offset:{lds_w('q',0,f>>1,f&1)}" for f in range(8)]
    def zacc(): return [f"v_mov_b64 {vr(AQ+k,2)}, 0" for k in range(0, 12, 2)]
    def pf_addr(w):
        L = [f"v_lshlrev_b32 v{vPf}, 3, v{vKrd}", f"v_and_b32 v{vPf}, 0x7ff, v{vPf}", f"v_mov_b32 v{vSn}, -1"]
        if w in (0, None):
            L += [f"s_sub_u32 s{sT0}, s{sFlB}, s{sVn}", "s_mov_b64 exec, 0xf0000",
                  f"v_lshrrev_b32 v{vPf}, 5, v{vPf}", f"v_add_u32 v{vPf}, s{sT0}, v{vPf}", "s_mov_b64 exec, -1",
                  f"v_writelane_b32 v{vJ}, s{sStep}, 20"]
        if o.hint and w in (1, None):
            L += [f"s_sub_u32 s{sT0}, s{sHs}, s{sVn}", f"s_sub_u32 s{sT0}, s{sT0}, s{sH}", f"s_add_u32 s{sT0}, s{sT0}, 2048", "s_mov_b64 exec, 0x7fff0000",
                  f"v_add_u32 v{vPf}, s{sT0}, v{vPf}", "s_mov_b64 exec, -1"]
        return L
    def step_scalars():
        return [x.strip() for x in (f"""s_xor_b32 s{sPh}, s{sStep}, s{sH}
        s_and_b32 s{sPh}, s{sPh}, 1
        s_lshl_b32 s{sT3}, s{sH}, 13
        s_add_u32 s{sT0}, s{sStep}, 3
        s_and_b32 s{sT0}, s{sT0}, 3
        s_lshl_b32 s{sMz}, s{sT0}, 13
        s_add_u32 s{sMz}, s{sMz}, s{sMoff}
        s_add_u32 s{sEx}, s{sKV}, {WS_EX}
        s_add_u32 s{sVc}, s{sKV}, {WS_VX}
        s_add_u32 s{sT1}, s{sStep}, 1
        s_min_u32 s{sT1}, s{sT1}, {0 if o.nofar else 63}
        s_lshl_b32 s{sT1}, s{sT1}, 18
        s_add_u32 s{sKV}, s{sT1}, s{sT3}
        s_add_u32 s{sKn}, s{sKV}, {WS_KX}
        s_lshl_b32 s{sT2}, s{sW}, 11
        s_add_u32 s{sVn}, s{sKV}, s{sT2}
        s_add_u32 s{sVn}, s{sVn}, {WS_VX}
        s_xor_b32 s{sM0k}, s{sM0k}, 8192
        s_mov_b32 m0, s{sM0k}
        s_cmp_eq_u32 s{sStep}, {o.nsteps-1}
        s_cselect_b32 s{sRange}, 0, {0 if o.force_slow else 48 << 23}""").split("\n")] + ([f"s_lshl_b32 s{sT0}, s{sStep}, 11", f"s_add_u32 s{sT0}, s{sT0}, {WS_HINT}", f"s_add_u32 s{sHs}, s{sT0}, s{sH}", f"s_add_u32 s{sT0}, s{sT0}, s{sCu}",
            f"s_add_u32 s{sHp}, s{S_WS}, s{sT0}", f"s_addc_u32 s{sHp+1}, s{S_WS+1}, 0"] if o.hint else [])
    if o.hint: g(f"s_getreg_b32 s{sCu}, hwreg(HW_REG_HW_ID, 8, 1)\ns_lshl_b32 s{sCu}, s{sCu}, 6")
    for x in wq0() + zacc() + step_scalars(): g(x)
    g(f"s_add_u32 s{sPw}, s{sPoff}, 4096")
    if o.stamps: g(f"s_mov_b32 s{sDump}, {WS_DBG + 512*1024}")
    g("s_waitcnt vmcnt(0) lgkmcnt(0)")
    g("s_barrier")
    for w in range(4):
        if w < 3: g(f"s_cmp_eq_u32 s{sW}, {w}\ns_cbranch_scc0 R_first{w}")
        for x in pf_addr(w): g(x)
        g(f"s_branch R{w}_loop")
        if w < 3: g(f"R_first{w}:")
    def smf(acc, A, B): g(f"v_smfmac_f32_16x16x64_bf16 {vr(acc,4)}, {A}, {B}, v{vIdx}")
    def mf(D, A, B, C, op="v_mfma_f32_16x16x32_bf16"): g(f"{op} {vr(D,4)}, {A}, {B}, {C}")
    m16 = "v_mfma_f32_16x16x16_bf16"
    def wb(mat, t):
        r, f = t >> 2, t & 3
        if (mat, r) in slot: return vr(KX + 8*f, 8)
        return wfrag(mat, r, f)
    ACC = {"q": AQ, "k": AK, "v": AV}
    def gm(mat, t, *fill):
        smf(ACC[mat], vr(M(t),4), wb(mat, t))
        stamp(f"{mat}{t}", 9)
        for x in fill: g(x)
    def dpp(dst, src): return f"v_mov_b32_dpp v{dst}, v{src} row_ror:8 row_mask:0xf bank_mask:0xf"
    def wkr(n): return f"ds_read_b128 {vr(KX+4*n,4)}, v{vWo} offset:{lds_w('k',3,n>>1,n&1)}"
    def kxr(n): return f"ds_read_b128 {vr(KX+4*n,4)}, v{vKrd} offset:{L_KB+1024*n}"
    def xr(b, x): return f"ds_read_b64_tr_b16 {vr(X+4*b+2*x,2)}, v{vXrd} offset:{L_XB+(32*b+16*x)*8}"
    def wor(r, n): return f"ds_read_b128 {vr(WOL[(r, n>>1)]+4*(n&1),4)}, v{vW2} offset:{lds_w('o',r,n>>1,n&1)-65536}"
    def cvt(d, a_, b_): return f"v_cvt_pk_bf16_f32 v{d}, v{a_}, v{b_}"
    def ex(r): return f"v_exp_f32 v{r}, v{r}"
    xb = lambda b: vr(X+4*b, 4)
    def ld2(regs, so):
        return [f"buffer_load_dwordx4 {vr(regs[0],4)}, v{vQ}, {W}, s{so} offen sc1", f"buffer_load_dwordx4 {vr(regs[1],4)}, v{vQ}, {W}, s{so} offen offset:1024 sc1"]
    def issue2(regs, so):
        for x in ld2(regs, so): g(x)
    def check_part(regs, n):
        r0, r1 = regs
        g(f"s_waitcnt vmcnt({n+1})")
        mf(DD, vr(SEL,4), vr(r0,4), 0)
        g(f"v_bitop3_b32 v{CK}, v{r0}, v{r0+2}, v{CK+2} bitop3:0x7e")
        g(f"s_waitcnt vmcnt({n})")
        mf(DD, vr(SEL,4), vr(r1,4), vr(DD,4))
        g(f"v_bitop3_b32 v{CK+1}, v{r1}, v{r1+2}, v{CK+2} bitop3:0x7e")
        g(f"v_bitop3_b32 v{CK}, v{CK}, v{CK+1}, 1 bitop3:0xa8")
        g(f"v_cmp_ne_u32 vcc, 0, v{CK}")
    def check_m(regs, n):
        r0, r1 = regs
        g(f"s_waitcnt vmcnt({n+1})")
        g(f"v_max3_u32 v{CK}, v{r0}, v{r0+1}, v{r0+2}")
        g(f"v_max_u32 v{CK}, v{CK}, v{r0+3}")
        g(f"s_waitcnt vmcnt({n}) lgkmcnt(0)")
        g(f"v_max3_u32 v{CK}, v{CK}, v{r1}, v{r1+1}")
        g(f"v_max3_u32 v{CK}, v{CK}, v{r1+2}, v{r1+3}")
        g(f"v_cmp_eq_u32 vcc, -1, v{CK}")
        for k in (0, 2): g(f"v_mov_b64 {vr(M(0)+k,2)}, {vr(r0+k,2)}")
        for k in (0, 2): g(f"v_mov_b64 {vr(M(2)+k,2)}, {vr(r1+k,2)}")
    def post_owr():
        g(dpp(O0+2, O0)); g(dpp(O0+3, O0+1))
        for r_ in (AK, AK+2, SX1, SX1+2, AV, AV+2): g(f"v_mov_b64 {vr(r_,2)}, 0")
    exs = "" if o.noexp else " sc1"

    def loop(w):
        N = f"R{w}"
        def mrd(t): return f"ds_read_b128 {vr(M(t),4)}, v{vMrd} offset:{L_MB + ((w + (t>>2)) & 3)*2048 + 512*(t&3)}"
        nlate = o.late[w]
        late = (zacc() + wq0())[14-nlate:]
        g(".p2align 4")
        g(f"{N}_top:")
        work = step_scalars()
        if w == 0:
            work += [f"s_add_u32 s{sReq}, s{sStep}, 3", f"s_lshr_b32 s{sReq}, s{sReq}, 1", f"s_min_u32 s{sReq}, s{sReq}, 32",
                     f"v_cmp_gt_u32 vcc, s{sReq}, v{vJ}", f"s_and_b32 s{sT0}, vcc_lo, 0xf0000", "s_cbranch_scc1 R_kvwait", "R_kvok:"]
        work += pf_addr(w) + late
        if o.stamps:
            work += ["s_waitcnt lgkmcnt(0)", f"s_lshl_b32 s{sT0}, s{sH}, 8", f"s_add_u32 s{sT0}, s{sT0}, s{sStep}", f"s_lshl_b32 s{sT0}, s{sT0}, 7",
                     f"s_add_u32 s{sDump}, s{sT0}, {WS_DBG + 1024*1024 + w*64*128 - 128 - 256*w}"]
            work += [f"v_writelane_b32 v{vJ}, s{sSt+2*n}, {32+n}" for n in range(len(o.sel) if o.sel else 13)]
            work += [f"v_writelane_b32 v{vJ}, s{sFailA}, 46", f"v_writelane_b32 v{vJ}, s{sBudget}, 47"]
        pp = [int(x) for x in o.posm[w].split("/")]; KP = len(pp)
        FILL = f"v_mov_b32 v{M(4)}, v{M(4)}" if o.warm else "s_nop 0"
        if o.warm:
            w2 = []
            for k, x in enumerate(work):
                w2.append(x)
                if k < 21 and k % 3 == 2: w2.append(FILL)
            work = w2
        while len(work) < pp[-1] + o.fb[w]: work.append(FILL)
        if o.b0 or o.hb:
            for x in work[:o.early[w]]: g(x)
            work = work[o.early[w]:]
            g("s_barrier")
            stamp("hint")
            while len(work) < pp[-1] + o.fb[w]: work.append(FILL)
        inex = False; pend = []
        for k in range(len(work) + 1):
            pend += [j for j in range(KP) if pp[j] == k]
            if not inex:
                for j in pend: issue2(PS[j], sMr)
                pend = []
            if k < len(work):
                g(work[k])
                if work[k].startswith("s_mov_b64 exec"): inex = not work[k].endswith("-1")
        g(f"{N}_poll:")
        for j in range(KP):
            check_m(PS[j], 2*(KP-1))
            if j < KP - 1:
                g(f"s_cbranch_vccz {N}_loop")
                issue2(PS[j], sMr)
                if o.stamps: g(f"s_sub_u32 s{sBudget}, s{sBudget}, 1")
        g(f"s_cbranch_vccnz {N}_pollB")
        g(f"{N}_loop:")
        stamp("start")
        far = [f"buffer_load_dwordx4 v{vQ}, {W}, s{sKn} offen sc1 lds", f"buffer_load_dwordx4 v{vQ}, {W}, s{sKn} offen offset:1024 sc1 lds",
               f"buffer_load_dword v{vJ}, v{vPf}, {W}, s{sVn} offen sc1"]
        pf = [f"s_mov_b64 exec, {'0xfffff' if w == 0 else '0x7fffffff' if (w == 1 and o.hint) else '0xffff'}", far[2], "s_mov_b64 exec, -1"]
        mz = f"buffer_store_dword v{vSn}, v{vMst}, {W}, s{sMz} offen"
        vld = [f"buffer_load_dwordx4 {vr(V+4*k,4)}, v{vQ}, {W}, s{sVc} offen offset:{1024*k} sc1" for k in range(2)]
        gm("q", 0, f"ds_write_b128 v{vQ}, {vr(M(0),4)} offset:{L_MB}", *([f"s_waitcnt vmcnt({2*KP-2})"] if o.opt else []))
        gm("q", 2, f"ds_write_b128 v{vQ}, {vr(M(2),4)} offset:{L_MB+1024}")
        if o.opt:
            gm("k", 0, dpp(M(1), M(0)), dpp(M(1)+1, M(0)+1), f"v_cmp_u_f32 vcc, v{AQ}, v{AQ+1}")
            gm("k", 2, f"v_cmp_u_f32 s[{sT2}:{sT3}], v{AQ+2}, v{AQ+3}", dpp(M(1)+2, M(0)+2))
            gm("v", 0, dpp(M(1)+3, M(0)+3))
            gm("v", 2, f"s_or_b64 vcc, vcc, s[{sT2}:{sT3}]", f"s_cbranch_vccnz {N}_fix")
            g(f"{N}_fixret:")
            gm("q", 1, vld[0], vld[1], "s_waitcnt lgkmcnt(0)", "s_barrier")
            stamp("B1", 2)
            g(mrd(4))
            gm("k", 1, mrd(5), dpp(M(3), M(2)), dpp(M(3)+1, M(2)+1))
            gm("v", 1, mrd(6), dpp(M(3)+2, M(2)+2), dpp(M(3)+3, M(2)+3), *pf)
            gm("q", 3, mrd(7))
        else:
            gm("k", 0, vld[0], dpp(M(1), M(0)))
            gm("k", 2, dpp(M(1)+1, M(0)+1), dpp(M(1)+2, M(0)+2))
            gm("v", 0, vld[1], dpp(M(1)+3, M(0)+3))
            gm("v", 2, dpp(M(3), M(2)), dpp(M(3)+1, M(2)+1))
            gm("q", 1, "s_waitcnt lgkmcnt(0)", "s_barrier")
            stamp("B1", 2)
            g(mrd(4))
            gm("k", 1, mrd(5), dpp(M(3)+2, M(2)+2), dpp(M(3)+3, M(2)+3))
            gm("v", 1, *pf)
            gm("q", 3, mrd(6), mrd(7))
        gm("k", 3, mrd(8), mz)
        gm("v", 3, mrd(9), "s_waitcnt lgkmcnt(5)" + (" vmcnt(4)" if KP > 2 else ""))
        seq = []
        for m_ in range(4): seq += [("q", 4+3*m_), ("q", 5+3*m_), ("q", 6+3*m_), ("k", 4+m_)]
        seq += [("k", t) for t in range(8, 16)]
        ds = [mrd(t) for t in range(10, 16)] + [wkr(n) for n in range(8)]
        issued = 6
        extra = {
          0: [far[0]], 2: [far[1]],
          16: [f"v_mul_f32 v{AQ}, s{sC}, v{AQ}"], 17: [f"v_mul_f32 v{AQ+1}, s{sC}, v{AQ+1}"],
          18: [f"v_mul_f32 v{AQ+2}, s{sC}, v{AQ+2}"], 19: ["s_waitcnt lgkmcnt(0)", f"v_mul_f32 v{AQ+3}, s{sC}, v{AQ+3}"],
          20: [cvt(AQ, AQ, AQ+1)], 21: [kxr(0), cvt(AQ+1, AQ+2, AQ+3)],
          22: [f"ds_write_b64 v{vXwr}, {vr(AQ,2)} offset:{L_XB}"], 23: [kxr(1), f"v_mov_b32 v{AQ}, v{vMask}"],
        }
        nyoung = 6
        if w == 0:
            extra[14] = ["s_mov_b64 exec, 0x100000", f"buffer_store_dword v{vJ}, off, {W}, s{sFlE} sc1", "s_mov_b64 exec, -1"]; nyoung += 1
        if o.stamps:
            extra[15] = ["s_mov_b64 exec, 0xffff", "s_lshl_b64 exec, exec, 32", f"buffer_store_dword v{vJ}, v{vXwr}, {W}, s{sDump} offen", "s_mov_b64 exec, -1"]; nyoung += 1
        for n, (mat, t) in enumerate(seq):
            fill = []
            nxt = seq[n+1] if n+1 < len(seq) else None
            if nxt and nxt[0] == "q":
                wv = " vmcnt(5)" if n == 1 else ""
                fill.append(f"s_waitcnt lgkmcnt({issued - (nxt[1] - 3)}){wv}")
            if n < len(ds): fill.append(ds[n]); issued += 1
            fill += extra.get(n, [])
            gm(mat, t, *fill)
        stamp("kdone", 2)
        gm("v", 5, f"v_mov_b32 v{AQ+1}, v{vMask}", f"v_mov_b64 {vr(AQ+2,2)}, {vr(AQ,2)}", cvt(E, AK, AK+1), cvt(E+1, AK+2, AK+3))
        gm("v", 4, f"ds_write_b64 v{vXwr}, {vr(E,2)} offset:{L_XB+2*XPL}")
        ek = f"buffer_store_dwordx2 {vr(E,2)}, v{vXwr}, {W}, s{sEx} offen{exs}"
        ev = f"buffer_store_dwordx2 {vr(VV+2,2)}, v{vXwr}, {W}, s{sEx} offen offset:{2*XPL}{exs}"
        gm("v", 10, ek)
        gm("v", 11, kxr(2), f"v_mov_b32 v{ONES}, 0x3f803f80")
        gm("v", 6, kxr(3), f"v_mov_b32 v{ONES+1}, 0x3f803f80")
        gm("v", 12, kxr(4), f"v_add_u32 v{vW2}, 0x10000, v{vWo}")
        gm("v", 13, "s_waitcnt lgkmcnt(3)", "s_barrier")
        stamp("B2")
        g(xr(0,0)); g(xr(0,1))
        gm("v", 14, xr(1,0), xr(1,1))
        gm("v", 15, xr(2,0), xr(2,1))
        gm("v", 7, xr(3,0), xr(3,1))
        gm("v", 8, kxr(5), f"v_mov_b64 {vr(ONES+2,2)}, {vr(ONES,2)}")
        gm("v", 9, kxr(6), "s_waitcnt lgkmcnt(6)")
        sw = [f"v_permlane32_swap_b32 v{VV+k}, v{VV+2+k}" for k in range(2)]
        sfill = {
          0: [kxr(7), wor(2, 0)],
          1: ["s_waitcnt lgkmcnt(4)", cvt(VV+2, AV, AV+1), cvt(VV+3, AV+2, AV+3)],
          2: [ev],
          3: [sw[0]], 4: [sw[1]],
          5: [ex(SM)], 6: [ex(SM+1)], 7: ["s_waitcnt lgkmcnt(1)", ex(SM+2)], 8: [ex(SM+3)],
          9: [ex(SX0)], 10: [ex(SX0+1)], 11: [ex(SX0+2), ex(SX0+3)],
        }
        n = 0
        for D, A_, C0 in ((SM, xb, None), (SX0, lambda b: vr(KX+4*b,4), "0"), (SX1, lambda b: vr(KX+16+4*b,4), "0")):
            for b in range(4):
                mf(D, A_(b), xb(b), C0 if (b == 0 and C0) else vr(D,4))
                stamp(f"S{n}", 9)
                for x in sfill.get(n, []): g(x)
                n += 1
        stamp("Sissued", 3)
        g(cvt(PM, SM, SM+1)); g(cvt(PM+1, SM+2, SM+3))
        g(cvt(PX, SX0, SX0+1)); g(cvt(PX+1, SX0+2, SX0+3))
        mf(LL, vr(ONES,2), vr(PM,2), 0, m16); g(ex(SX1))
        mf(O0, vr(VV,2), vr(PM,2), 0, m16); g(ex(SX1+1))
        mf(O1, vr(VV+2,2), vr(PM,2), 0, m16); g(ex(SX1+2))
        g(ex(SX1+3))
        g(cvt(PX+2, SX1, SX1+1)); g(cvt(PX+3, SX1+2, SX1+3))
        g(f"s_waitcnt vmcnt({nyoung})")
        g(f"v_mov_b64 {vr(AQ,2)}, 0")
        mf(LL, vr(ONES,4), vr(PX,4), vr(LL,4)); g(wor(2, 1)); g(wor(3, 0))
        mf(O0, vr(V,4), vr(PX,4), vr(O0,4)); g(wor(3, 1)); g(wor(2, 2))
        mf(O1, vr(V+4,4), vr(PX,4), vr(O1,4))
        stamp("PV", 3)
        g(f"v_rcp_f32 v{RC}, v{LL}")
        g(f"v_mov_b64 {vr(AQ+2,2)}, 0")
        g(f"v_mul_f32 v{O0}, v{RC}, v{O0}")
        g(f"v_mov_b32_dpp v{RC}, v{RC} row_ror:8 row_mask:0xf bank_mask:0xc")
        for k in range(1, 4): g(f"v_mul_f32 v{O0+k}, v{RC}, v{O0+k}")
        for k in range(4): g(f"v_mul_f32_dpp v{O0+k}, v{O1+k}, v{RC} row_ror:8 row_mask:0xf bank_mask:0xc")
        g(cvt(O0, O0, O0+1)); g(cvt(O0+1, O0+2, O0+3))
        g(f"ds_write_b64 v{vOwr}, {vr(O0,2)} offset:{L_OB}")
        stamp("owr")
        g(f"v_subrev_u32 v{RC}, {(127-24) << 23}, v{RC}")
        g(f"v_cmp_le_u32 vcc, s{sRange}, v{RC}")
        post_owr()
        g(f"v_xor_b32 v{vKrd}, 8192, v{vKrd}")
        g("s_cbranch_vccnz R_slow")
        g(f"{N}_slowret:")
        HS = o.hint and w == (o.hbw if o.hb else 3); HP = o.hint and w == o.hw
        if HS: g(f"v_bfe_u32 v{V}, v{vKrd}, 4, 5"); g(f"v_lshlrev_b32 v{V}, 6, v{V}"); g(f"v_mov_b32 v{V+1}, -1")
        if HP: g(f"s_mov_b64 s[{sHv}:{sHv+1}], 0")
        nprobe = [0]
        def probe():
            if not HP or nprobe[0] >= o.hint: return ""
            nprobe[0] += 1
            return f"s_load_dwordx8 s[{sHv}:{sHv+7}], s[{sHp}:{sHp+1}], {128*(nprobe[0]-1)}"
        smf(OA[0], vr(O0,4), wfrag("o",0,0))
        g("s_waitcnt lgkmcnt(0)")
        g("s_barrier")
        stamp("B3", 2)
        for r in range(1, 4): g(f"ds_read_b128 {vr(OF[r],4)}, v{vMrd} offset:{L_OB + 512*(w ^ r)}")
        hst = [f"s_mov_b64 exec, {(1 << (2*o.hint)) - 1}", f"buffer_store_byte v{V+1}, v{V}, {W}, s{sHs} offen", "s_mov_b64 exec, -1"]
        smf(OA[1], vr(O0,4), wfrag("o",0,1))
        if HS and not o.hb and o.hpos == 1:
            for x in hst: g(x)
        smf(OA[2], vr(O0,4), wfrag("o",0,2)); g(wor(2, 3))
        smf(OA[3], vr(O0,4), wfrag("o",0,3)); g(wor(3, 2)); g("s_waitcnt lgkmcnt(4)")
        def wo(r, u): return wfrag("o",1,u) if r == 1 else vr(WOL[(r, u)], 8)
        pa = o.posa[w].split("/"); KA = len(pa)
        vm = []
        def emit(x):
            if x.startswith("buffer_"): vm.append(x)
            g(x)
        def wm(r, u, *fill):
            smf(OA[u], vr(OF[r],4), wo(r, u))
            stamp(f"w{r}{u}", 9)
            if HS and not o.hb and o.hpos == 10*r + u:
                for x in hst: emit(x)
            for key, regs in zip(pa, RS):
                if key == f"w{r}{u}":
                    for x in ld2(regs, sRoff): emit(x)
            for x in fill: emit(x)
        def pst(u): return f"buffer_store_dwordx2 {vr(OA[u],2)}, v{vPst}, {W}, s{sPoff if u < 2 else sPw} offen offset:{2048*(u&1)}"
        def pcv(u): return [cvt(OA[u], OA[u], OA[u]+1), cvt(OA[u]+1, OA[u]+2, OA[u]+3), f"v_and_or_b32 v{OA[u]}, v{OA[u]}, -2, s{sPh}"]
        wm(1, 0, wor(3, 3), "s_waitcnt lgkmcnt(4)")
        wm(2, 0, wor(2, 4), "s_waitcnt lgkmcnt(4)")
        wm(3, 0, wor(2, 5), wor(3, 4))
        wm(1, 1, wor(3, 5), wor(2, 6), "s_waitcnt lgkmcnt(5)", *pcv(0))
        wm(2, 1, pst(0))
        wm(3, 1, wor(2, 7), wor(3, 6))
        wm(1, 2, f"s_add_u32 s{sStep}, s{sStep}, 1", wor(3, 7), "s_waitcnt lgkmcnt(4)")
        wm(2, 2, f"s_and_b32 s{sT0}, s{sStep}, 3", f"s_lshl_b32 s{sT0}, s{sT0}, 13", *pcv(1))
        wm(3, 2, f"s_add_u32 s{sMw}, s{sT0}, s{sMoff}", pst(1))
        wm(1, 3, f"s_add_u32 s{sMr}, s{sT0}, {WS_M}", "s_waitcnt lgkmcnt(0)")
        pa_probe = (lambda: "") if o.hb else probe
        wm(2, 3, pa_probe(), *pcv(2))
        wm(3, 3, pst(2))
        g(pa_probe())
        sel = [f"v_mov_b32 v{DD}, 0x3f80", f"v_cndmask_b32 v{DD}, v{DD}, 1.0, s[{sMaskOdd}:{sMaskOdd+1}]"]
        sel += [f"v_cndmask_b32 v{SEL+d}, 0, v{DD}, s[{sMaskD+2*d}:{sMaskD+2*d+1}]" for d in range(4)]
        for x in sel[:4]: g(x)
        for x in pcv(3): g(x)
        g(pa_probe())
        for key, regs in zip(pa, RS):
            if key == "b3":
                for x in ld2(regs, sRoff): emit(x)
        emit(pst(3))
        stamp("pst")
        pre = sel[4:] + [f"v_lshrrev_b32 v{CK+2}, 6, v{vKrd}", f"v_xnor_b32 v{CK+2}, s{sStep}, v{CK+2}"] + (zacc() + wq0())[:14-nlate]
        def hspin():
            while nprobe[0] < o.hint + o.hextra:
                x = probe()
                if not x: nprobe[0] += 1
                g(x)
                g(f"s_and_b64 s[{sT0}:{sT1}], s[{sHv}:{sHv+1}], s[{sHv+2}:{sHv+3}]")
                g(f"s_and_b64 s[{sT2}:{sT3}], s[{sHv+4}:{sHv+5}], s[{sHv+6}:{sHv+7}]")
                g(f"s_nand_b64 s[{sT0}:{sT1}], s[{sT0}:{sT1}], s[{sT2}:{sT3}]")
                g(f"s_cbranch_scc0 {N}_top")
        if o.hint and not o.hb:
            if HP:
                while nprobe[0] < o.hint + o.hextra:
                    x = probe()
                    if not x: nprobe[0] += 1
                    g(x)
                    g(f"s_and_b64 s[{sT0}:{sT1}], s[{sHv}:{sHv+1}], s[{sHv+2}:{sHv+3}]")
                    g(f"s_and_b64 s[{sT2}:{sT3}], s[{sHv+4}:{sHv+5}], s[{sHv+6}:{sHv+7}]")
                    g(f"s_nand_b64 s[{sT0}:{sT1}], s[{sT0}:{sT1}], s[{sT2}:{sT3}]")
                    g(f"s_cbranch_scc0 {N}_hint")
                g(f"{N}_hint:")
            else:
                while len(pre) > 8 - min(nlate, 8) and not pre[0].startswith("ds_"): g(pre.pop(0))
            g("s_barrier")
            stamp("hint")
        while len(pre) < max(int(key[1:].split("v")[0]) if key[0] == "p" else 0 for key in pa) + o.fa[w]: pre.append(FILL)
        for k in range(len(pre) + 1):
            for key, regs in zip(pa, RS):
                if key[0] == "p" and int(key[1:].split("v")[0]) == k:
                    if "v" in key:
                        j = vm.index(pst(int(key.split("v")[1])))
                        g(f"s_waitcnt vmcnt({len(vm) - 1 - j})")
                    if regs is RS[0]: stamp("rgo")
                    for x in ld2(regs, sRoff): emit(x)
            if k < len(pre): g(pre[k])
        if HS and o.hb:
            g(f"s_waitcnt vmcnt({len(vm) - 1 - vm.index(pst(o.hbv))})")
            for x in hst: emit(x)
        nR = [len(vm) - 1 - vm.index(ld2(RS[j], sRoff)[1]) + 2*j for j in range(KA)]
        for j in range(KA):
            check_part(RS[j], nR[j])
            if j < KA - 1:
                g(f"s_cbranch_vccz {N}_redok")
                issue2(RS[j], sRoff)
                if o.stamps: g(f"s_add_u32 s{sFailA}, s{sFailA}, 1")
        g(f"s_cbranch_vccnz {N}_red2")
        g(f"{N}_redok:")
        stamp("rok", 9)
        if o.hb and o.hbpre: g(probe())
        for sh in (8, 4):
            for k in range(2): g(f"v_add_f32_dpp v{DD+k}, v{DD+k}, v{DD+k} row_ror:{sh} row_mask:0xf bank_mask:0xf")
        g(cvt(DD, DD, DD+1))
        g(f"buffer_store_dword v{DD}, v{vMst}, {W}, s{sMw} offen")
        stamp("pub")
        if o.hb and HP: hspin()
        g(f"s_branch {N}_top")
        g(f"{N}_red2:")
        for j in range(KA):
            issue2(RS[(j-1) % KA], sRoff)
            g(f"s_add_u32 s{sFailA}, s{sFailA}, 1")
            check_part(RS[j], 2*(KA-1))
            g(f"s_cbranch_vccz {N}_redok")
        g(f"s_cmp_lt_u32 s{sFailA}, 0x40000")
        g(f"s_cbranch_scc1 {N}_red2")
        g("s_endpgm")
        g(f"{N}_pollB:")
        issue2(PS[KP-1], sMr)
        g(f"s_sub_u32 s{sBudget}, s{sBudget}, 1")
        g(f"s_cmp_gt_i32 s{sBudget}, 0")
        g(f"s_cbranch_scc1 {N}_poll")
        g("s_endpgm")
    for w in range(4): loop(w)
    if o.stamps:
        while len(o.stamp_names) < 13: o.stamp_names.append("-")
        o.stamp_names.append("Mok")
    g("R_kvwait:")
    g(f"v_bfe_u32 v{CK}, v{vKrd}, 4, 2\nv_lshlrev_b32 v{CK}, 2, v{CK}\nv_mov_b32 v{CK+1}, s{sReq}")
    roles.spin(g, "R_kv", CK, f"s{sFlB}", CK+1, CK+3)
    g("s_branch R_kvok")
    g("R_slow:")
    g(f"s_cmp_eq_u32 s{sStep}, {o.nsteps-1}")
    g("s_cbranch_scc1 R_done")
    g("s_waitcnt lgkmcnt(0)")
    g(f"v_xor_b32 v{vKrd}, 8192, v{vKrd}")
    for n in range(8): g(kxr(n))
    g(f"v_xor_b32 v{vKrd}, 8192, v{vKrd}")
    g("s_waitcnt lgkmcnt(0)")
    for b in range(4): g(xr(b, 0)); g(xr(b, 1))
    for k in range(4): g(f"v_mov_b32 v{SM+k}, v{vMask}")
    g("s_waitcnt lgkmcnt(0)")
    for D, A_, C0 in ((SX0, lambda b: vr(KX+4*b,4), "0"), (SX1, lambda b: vr(KX+16+4*b,4), "0"), (SM, xb, None)):
        for b in range(4): mf(D, A_(b), xb(b), C0 if (b == 0 and C0) else vr(D,4))
    g(wor(2, 2))
    sregs = [SX0+j for j in range(4)] + [SX1+j for j in range(4)] + [SM+j for j in range(4)]
    mx, mt = O0, O0+1
    g(f"v_max3_f32 v{mx}, v{sregs[0]}, v{sregs[1]}, v{sregs[2]}")
    for k in range(3, 11, 2): g(f"v_max3_f32 v{mx}, v{mx}, v{sregs[k]}, v{sregs[k+1]}")
    g(f"v_max_f32 v{mx}, v{mx}, v{sregs[11]}")
    for sw in ("v_permlane32_swap_b32", "v_permlane16_swap_b32"):
        g(f"v_mov_b32 v{mt}, v{mx}")
        g(f"{sw} v{mx}, v{mt}")
        g(f"v_max_f32 v{mx}, v{mx}, v{mt}")
    for s_ in sregs: g(f"v_sub_f32 v{s_}, v{s_}, v{mx}")
    for s_ in sregs: g(ex(s_))
    for k in range(4): g(cvt(PX+k, sregs[2*k], sregs[2*k+1]))
    for k in range(2): g(cvt(PM+k, sregs[8+2*k], sregs[9+2*k]))
    mf(LL, vr(ONES,4), vr(PX,4), 0); mf(O0, vr(V,4), vr(PX,4), 0); mf(O1, vr(V+4,4), vr(PX,4), 0)
    mf(LL, vr(ONES,2), vr(PM,2), vr(LL,4), m16); mf(O0, vr(VV,2), vr(PM,2), vr(O0,4), m16); mf(O1, vr(VV+2,2), vr(PM,2), vr(O1,4), m16)
    g(f"v_rcp_f32 v{RC}, v{LL}")
    g(f"v_mov_b32_dpp v{RC}, v{RC} row_ror:8 row_mask:0xf bank_mask:0xc")
    for k in range(4): g(f"v_mul_f32 v{O0+k}, v{RC}, v{O0+k}")
    for k in range(4): g(f"v_mul_f32_dpp v{O0+k}, v{O1+k}, v{RC} row_ror:8 row_mask:0xf bank_mask:0xc")
    g(cvt(O0, O0, O0+1)); g(cvt(O0+1, O0+2, O0+3))
    g(f"ds_write_b64 v{vOwr}, {vr(O0,2)} offset:{L_OB}")
    post_owr()
    for k in range(0, 4, 2): g(f"v_mov_b64 {vr(AQ+k,2)}, 0")
    g("s_waitcnt lgkmcnt(0)")
    for w in range(3): g(f"s_cmp_eq_u32 s{sW}, {w}\ns_cbranch_scc1 R{w}_slowret")
    g("s_branch R3_slowret")
    g("R_done:")
    g("s_waitcnt vmcnt(0) lgkmcnt(0)")
    g("s_barrier")
    roles.set_flag(g, sFlE, o.nsteps, vJ, one=True)

def gen(o):
    g = G()
    R = roles
    g(f"s_cmp_ge_u32 s2, 256")
    g("s_cbranch_scc0 K_go")
    g("s_endpgm")
    g("K_go:")
    if o.prof or o.ronly or o.diag:
        g("s_memrealtime s[96:97]")
        g("s_memtime s[100:101]")
    srd(g, S_WS, 96, WS_SIZE); srd(g, S_DBG, 88, 256)
    if o.wpf and not o.ronly:
        for k, off in enumerate((64, 40, 48, 56)): srd(g, 56+4*k, off, 4*MB_)
    g(f"""v_lshrrev_b32 v1, 6, v0
    s_mov_b32 s{sBudget}, 0x40000
    v_readfirstlane_b32 s{sW}, v1
    s_getreg_b32 s3, hwreg(HW_REG_XCC_ID)
    s_and_b32 s3, s3, 7
    s_mul_i32 s20, s3, 24
    s_add_u32 s20, s20, 56
    s_cmp_eq_u32 s3, 0
    s_cselect_b32 s20, 0, s20
    v_mov_b32 v2, 1
    v_mov_b32 v3, 0
    s_cmp_eq_u32 s{sW}, 0
    s_cselect_b64 exec, 1, 0
    s_waitcnt lgkmcnt(0)
    buffer_atomic_add v2, off, s[{S_DBG}:{S_DBG+3}], s20 sc0
    s_mov_b64 exec, -1""")
    if o.wpf and not o.ronly:
        g(f"""s_cmp_eq_u32 s3, 0
        s_cbranch_scc1 K_nopf
        s_lshr_b32 s21, s2, 3
        s_mul_i32 s21, s21, 7
        s_add_u32 s21, s21, s3
        s_sub_u32 s21, s21, 1
        s_lshl_b32 s21, s21, 2
        s_add_u32 s21, s21, s{sW}
        s_mul_i32 s21, s21, 37
        v_and_b32 v4, 63, v0
        v_cmp_gt_u32 vcc, 37, v4
        v_add_u32 v4, s21, v4
        v_lshlrev_b32 v4, 7, v4
        s_barrier
        s_mov_b64 exec, vcc""")
        for k in range(o.wpf): g(f"buffer_load_dword v{250+k}, v4, s[{56+4*k}:{59+4*k}], 0 offen")
        g(f"""s_mov_b64 exec, -1
        s_waitcnt vmcnt({o.wpf})
        s_branch K_got
        K_nopf:""")
    g(f"""s_waitcnt vmcnt(0)
    K_got:
    s_cmp_eq_u32 s{sW}, 0
    s_cbranch_scc0 K_tick
    s_mov_b64 exec, 1
    ds_write_b32 v3, v2
    s_waitcnt lgkmcnt(0)
    s_mov_b64 exec, -1
    K_tick:
    s_barrier
    ds_read_b32 v2, v3
    s_waitcnt lgkmcnt(0)
    v_readfirstlane_b32 s{sH}, v2
    s_cmp_lt_u32 s{sH}, 32
    s_cbranch_scc1 K_role
    s_endpgm
    K_role:""")
    if o.prof == 2:
        g(f"""s_lshl_b32 s20, s3, 5
        s_add_u32 s20, s20, s{sH}
        s_mov_b32 s97, 228
        s_cmp_eq_u32 s20, 159
        s_cselect_b32 s97, 36, s97
        s_cmp_eq_u32 s20, 0
        s_cselect_b32 s97, 8, s97
        s_cmp_eq_u32 s{sW}, 0
        s_cselect_b32 s97, s97, 228
        v_mov_b32 v254, s96
        s_cmp_lt_u32 s97, 64
        s_cselect_b64 exec, 1, 0
        buffer_store_dword v254, off, s[{S_DBG}:{S_DBG+3}], s97 sc1
        s_mov_b64 exec, -1""")
    elif o.prof:
        g(f"""s_lshl_b32 s20, s3, 5
        s_add_u32 s20, s20, s{sH}
        s_lshl_b32 s20, s20, 5
        v_mov_b32 v254, s96
        s_add_u32 s97, s20, {WS_DBG}
        s_mov_b64 exec, 1
        buffer_store_dword v254, off, {W}, s97
        s_mov_b64 exec, -1""")
    g(f"""s_cmp_eq_u32 s3, 0
    s_cbranch_scc1 R_entry""")
    if o.ronly:
        g("s_endpgm")
    else:
        g(f"""s_sub_u32 s3, s3, 1
        s_lshl_b32 s3, s3, 5
        s_add_u32 s{R.sK}, s3, s{sH}
        v_and_b32 v{R.vL}, 63, v0""")
        R.gemm_setup(g, o, 80)
        R.gen_gemm(g, o)
        g(f"""s_cmp_eq_u32 s{R.sPhase}, 3
        s_cbranch_scc0 W_next
        s_endpgm
        W_next:
        s_cmp_ge_u32 s{R.sK}, 192
        s_cbranch_scc1 FA_entry""")
        R.gen_att(g, o)
        g(f"s_cmp_ge_u32 s{R.sK}, 128\ns_cbranch_scc1 W_a3")
        R.gen_fg(g, o)
        R.gen_fa(g, o)
    gen_R(g, o)
    R.tstamp(g, o, 6)
    if o.prof == 3:
        g("s_mov_b64 exec, 1\ns_add_u32 s97, s97, 65536")
        for k in range(6): g(f"v_mov_b32 v1, s{68+2*k}\nbuffer_store_dword v1, off, {W}, s97 offset:{4*k}")
    if o.diag:
        if o.diag == 3: g("s_memrealtime s[100:101]")
        if o.diag == 1: g("s_mov_b32 s100, s96")
        g(f"""s_waitcnt lgkmcnt(0)
        s_add_u32 s100, s100, 20000
        D_spin:
        s_memrealtime s[98:99]
        s_waitcnt lgkmcnt(0)
        s_sub_u32 s98, s98, s100
        s_cmp_lt_i32 s98, 0
        s_cbranch_scc1 D_spin""")
    if o.ronly:
        g(f"""s_memrealtime s[98:99]
        s_memtime s[94:95]
        s_waitcnt lgkmcnt(0)
        s_sub_u32 s98, s98, s96
        s_sub_u32 s94, s94, s100
        v_mov_b32 v3, s94
        v_mov_b32 v1, s98
        v_mov_b32 v2, 0
        s_lshl_b32 s20, s{sH}, 2
        s_add_u32 s20, s20, {WS_DBG + 1000*1024}
        buffer_store_dword v1, v2, s[{S_WS}:{S_WS+3}], s20 offen
        buffer_store_dword v3, v2, s[{S_WS}:{S_WS+3}], s20 offen offset:128
        s_waitcnt vmcnt(0)""")
        if o.stamps:
            g(f"""s_memrealtime s[98:99]
            s_waitcnt lgkmcnt(0)
            s_add_u32 s96, s98, 1100
            s_and_b32 s96, s96, 0xfffffc00
            s_mov_b32 s21, 0
            s_mov_b32 s22, 0
            C_spin:
            s_memrealtime s[98:99]
            s_memtime s[94:95]
            s_waitcnt lgkmcnt(0)
            s_sub_u32 s98, s98, s96
            s_cmp_lt_i32 s98, 0
            s_cbranch_scc1 C_spin
            s_lshr_b32 s94, s94, 3
            s_add_u32 s21, s21, s94
            s_add_u32 s96, s96, 52
            s_add_u32 s22, s22, 1
            s_cmp_lt_u32 s22, 8
            s_cbranch_scc1 C_spin
            v_mov_b32 v3, s21
            v_mov_b32 v1, s96
            buffer_store_dword v1, v2, s[{S_WS}:{S_WS+3}], s20 offen offset:256
            buffer_store_dword v3, v2, s[{S_WS}:{S_WS+3}], s20 offen offset:384
            s_waitcnt vmcnt(0)""")
    g("s_endpgm")
    body = g.text()
    if o.stamps: body = ("; RT\n" if o.rt else "") + "; STAMPS " + " ".join(o.stamp_names) + "\n" + body
    head = open("cdna_kernels/" + NAME + ".s.ref").read().split("; Override")[0]
    return (head + f"; @launch grid=(256,1,1) block=(256,1,1) lds={LDS_BYTES}\n"
      f'.amdgcn_target "amdgcn-amd-amdhsa--gfx950"\n.text\n.globl {NAME}_kernel\n.p2align 8\n.type {NAME}_kernel,@function\n{NAME}_kernel:\n'
      + body +
      f'.section .rodata,"a"\n.p2align 6\n.amdhsa_kernel {NAME}_kernel\n  .amdhsa_next_free_vgpr 512\n  .amdhsa_next_free_sgpr 102\n  .amdhsa_accum_offset 256\n'
      '  .amdhsa_group_segment_fixed_size 0\n  .amdhsa_kernarg_size 104\n  .amdhsa_user_sgpr_count 2\n  .amdhsa_user_sgpr_kernarg_segment_ptr 1\n'
      '  .amdhsa_system_sgpr_workgroup_id_x 1\n  .amdhsa_float_denorm_mode_32 3\n.end_amdhsa_kernel\n')

if __name__ == "__main__":
    o = Opt()
    out = sys.argv[1]
    for a in sys.argv[2:]:
        k, v = a.split("=")
        setattr(o, k, v if k == 'nt' else v.split(',') if k in ('sel', 'posa', 'posm') else [int(x) for x in v.split(',')] if ',' in v else int(v))
    open(out, "w").write(gen(o))
```

```python
import sys, math
from asmgen import *

from cfg import *
import roles

class Opt:
    nsteps = 64
    prof = 0
    pmask = 1
    dev = 0
    wpf = 0
    fgsc = 0
    ofirst = 1
    nt = ''
    gspread = 1
    xpf = 1
    diag = 0
    ronly = 0
    dbg_m = False
    stamps = False
    rdelay = 20
    force_slow = 0
    nofar = 0
    noexp = 0
    pdelay = [12, 12, 12, 12]
    lateb1 = [0, 0, 0, 0]
    posa = ['p10v1', 'p10v2', 'p18v2/p18v3', 'p18v2/p18v3']
    posm = ['40/70', '30/60', '20/50', '20/50']
    late = [0, 0, 0, 0]
    hint = 0
    opt = 0
    warm = 0
    hb = 0
    hbw = 3
    hbv = 3
    hbpre = 2
    early = [0, 0, 0, 0]
    fa = [0, 0, 0, 0]
    fb = [0, 0, 0, 0]
    b0 = 0
    hpos = 11
    hw = 0
    hextra = 5
    hd = [0, 4, 12, 24]
    nofark = 0
    nofarv = 0
    pgap = 0
    sel = []
    rgap = 0
    uspread = 1
    rt = 0
    noreset = 0
    rs = 8192
    rwait = 2

def gen_R(g, o):
    vQ, vIdx, vMrd, vXwr, vXrd, vKrd, vOwr, vWo, vJ, vPst, vMst, vMask = range(12)
    V = 12; AQ, AK, AV = 20, 24, 28; KX = 32; MF = 64
    def M(t): return MF + 4*t
    T = MF
    TMP1 = MF + 32
    perm = [("q",1),("q",2),("q",3),("k",0),("k",1),("k",2),("v",0),("v",1),("v",2),("v",3),("o",0),("o",1)]
    loc = {key: (("a", 32*n) if n < 8 else ("v", 128 + 32*(n-8))) for n, key in enumerate(perm)}
    ploc = dict(loc); ploc[("q",0)] = ("v", KX); ploc[("k",3)] = ("v", TMP1)
    slot = {("q",0): 0, ("k",3): 1, ("o",2): 2, ("o",3): 3}
    order = [(m, c) for m in ("oqkv" if o.ofirst else "qkvo") for c in range(4)]
    def cbase(n):
        if not o.ofirst or n < 4: return L_W + (n & 3) * 32768
        return (0, L_W, L_W + 32768)[(n - 4) % 3]
    def wfrag(mat, r, f):
        k, b = loc[(mat, r)]
        return vr(b + 8*f, 8, k)
    sT0, sT1, sT2, sT3 = 20, 21, 22, 23
    sPw, sPh, sExw, sMr, sMw, sMz, sKV, sEx, sRange, sM0k = 24, 25, 26, 27, 28, 29, 30, 31, 32, 33
    sO1, sO2, sO3, sMoff = 34, 35, 36, 37
    sMaskOdd, sMaskD, sMaskLo8 = 38, 40, 48
    sC, sPoff, sRoff = 50, 51, 3
    sVc, sFlB, sKn, sVn, sFailA, sFlE, sReq, sDump = 52, 53, 54, 55, 56, 57, 58, 59
    sCu = 35
    sHs, sHp, sHv = 34, 8, 60
    S_Q, S_K, S_V, S_O = 52, 56, 60, 64
    sSt = 68
    W = f"s[{S_WS}:{S_WS+3}]"
    SC = " sc1" if o.dev else ""
    g("R_entry:")
    if o.diag == 4: g("s_memrealtime s[100:101]")
    if o.prof == 3: g("s_memrealtime s[68:69]")
    srd(g, S_Q, 40, 4*MB_); srd(g, S_K, 48, 4*MB_); srd(g, S_V, 56, 4*MB_); srd(g, S_O, 64, 4*MB_)
    srd(g, S_A, 32, 8192)
    g(f"""v_and_b32 v{T}, 63, v0
    v_and_b32 v{T+1}, 15, v0
    v_lshrrev_b32 v{T+2}, 4, v{T}
    v_lshrrev_b32 v{T+3}, 2, v{T+1}
    v_and_b32 v{T+4}, 3, v0""")
    l, i, gg, a, c = T, T+1, T+2, T+3, T+4
    vDq, vDo, vTq, vTo, t0, t1, t2, vTT = T+5, T+6, T+7, T+8, T+9, T+10, T+11, T+16
    g(f"""s_and_b32 s{sT0}, s{sW}, 1
    s_lshl_b32 s{sT0}, s{sT0}, 3
    v_and_b32 v{t0}, 1, v{gg}
    v_lshlrev_b32 v{t0}, 2, v{t0}
    v_or_b32 v{t0}, s{sT0}, v{t0}
    v_xor_b32 v{t0}, v{t0}, v{i}
    v_lshlrev_b32 v{t0}, 4, v{t0}
    v_lshl_add_u32 v{vDq}, v{gg}, 13, v{t0}
    s_lshl_b32 s{sT0}, s{sW}, 15
    v_add_u32 v{vDq}, s{sT0}, v{vDq}""")
    g(f"""s_and_b32 s{sT0}, s{sW}, 1
    s_lshr_b32 s{sT1}, s{sW}, 1
    s_lshl_b32 s{sT1}, s{sT1}, 4
    s_add_u32 s{sT3}, s{sT0}, s{sT1}
    s_lshl_b32 s{sT3}, s{sT3}, 10
    s_lshl_b32 s{sT0}, s{sW}, 2
    v_xor_b32 v{vDo}, s{sT0}, v{l}
    v_lshlrev_b32 v{vDo}, 4, v{vDo}
    v_add_u32 v{vDo}, s{sT3}, v{vDo}
    s_and_b32 s{sT0}, s{sW}, 1
    s_lshr_b32 s{sT1}, s{sW}, 1
    s_lshl_b32 s{sT1}, s{sT1}, 2
    s_add_u32 s{sT3}, s{sT0}, s{sT1}
    s_lshl_b32 s{sT3}, s{sT3}, 10""")
    g("s_waitcnt lgkmcnt(0)")
    def dma_chunk(n):
        mat, cc = order[n]
        base = cbase(n)
        nt = " nt" if mat in o.nt else ""
        if mat != "o":
            S = {"q": S_Q, "k": S_K, "v": S_V}[mat]
            g(f"s_lshl_b32 s{sT0}, s{sH}, 8")
            g(f"s_add_u32 s{sT0}, s{sT0}, {(64*(cc>>1) + 16*(cc&1))*8192}")
            g(f"s_lshl_b32 s{sT1}, s{sW}, 10")
            g(f"s_add_u32 s{sT1}, s{sT1}, {base}")
            for mm in range(8):
                g(f"s_mov_b32 m0, s{sT1}")
                g(f"s_add_u32 s{sT1}, s{sT1}, 4096")
                g(f"buffer_load_dwordx4 v{vDq}, s[{S}:{S+3}], s{sT0} offen{nt} lds")
                g(f"s_add_u32 s{sT0}, s{sT0}, {(32 if mm % 2 == 0 else 96)*8192}")
        else:
            g(f"s_lshl_b32 s{sT0}, s{sH}, 17")
            g(f"s_add_u32 s{sT0}, s{sT0}, {(8*(cc>>1) + 2*(cc&1))*1024}")
            g(f"s_add_u32 s{sT1}, s{sT3}, {base}")
            for mm in range(8):
                g(f"s_mov_b32 m0, s{sT1}")
                g(f"s_add_u32 s{sT1}, s{sT1}, {(2 if mm % 2 == 0 else 6)*1024}")
                g(f"buffer_load_dwordx4 v{vDo}, s[{S_O}:{S_O+3}], s{sT0} offen{nt} lds")
                g(f"s_add_u32 s{sT0}, s{sT0}, {(4 if mm % 2 == 0 else 28)*1024}")
    g(f"""v_mov_b64 {vr(T+28,2)}, 0
    v_mov_b64 {vr(T+30,2)}, 0
    v_lshlrev_b32 v{t0}, 4, v{l}
    s_lshl_b32 s{sT0}, s{sH}, 8
    s_add_u32 s{sT0}, s{sT0}, {WS_FL + (65536 if o.ronly else 0)}
    s_cmp_eq_u32 s{sW}, 0
    s_cselect_b64 exec, 0xffff, 0
    buffer_store_dwordx4 {vr(T+28,4)}, v{t0}, {W}, s{sT0} offen sc1
    s_mov_b64 exec, -1""")
    dma_chunk(0)
    ih = T+17; i7 = T+18; gh = T+19; gl = T+20
    g(f"""v_lshrrev_b32 v{ih}, 3, v{i}
    v_and_b32 v{i7}, 7, v{i}
    v_lshrrev_b32 v{gh}, 1, v{gg}
    v_and_b32 v{gl}, 1, v{gg}
    v_lshlrev_b32 v{vKrd}, 4, v{l}
    v_lshlrev_b32 v{t0}, 4, v{i7}
    v_lshl_add_u32 v{vMrd}, v{gg}, 7, v{t0}
    v_lshl_add_u32 v{vQ}, v{ih}, 9, v{vMrd}
    s_lshl_b32 s{sT0}, s{sW}, 11
    v_add_u32 v{vQ}, s{sT0}, v{vQ}
    v_cmp_gt_u32 s[{sMaskLo8}:{sMaskLo8+1}], 8, v{i}
    v_mov_b32 v{t0}, 0xeeeeeeee
    v_mov_b32 v{t1}, 0x44444444
    v_cndmask_b32 v{vIdx}, v{t0}, v{t1}, s[{sMaskLo8}:{sMaskLo8+1}]
    v_lshl_add_u32 v{vOwr}, v{ih}, 3, v{vMrd}
    s_lshl_b32 s{sT0}, s{sW}, 9
    v_add_u32 v{vOwr}, s{sT0}, v{vOwr}
    v_lshl_add_u32 v{vXwr}, v{gh}, 4, v{i}
    v_lshlrev_b32 v{vXwr}, 3, v{vXwr}
    v_mul_u32_u24 v{t0}, {XPL}, v{gl}
    v_add_u32 v{vXwr}, v{vXwr}, v{t0}
    s_lshl_b32 s{sT0}, s{sW}, 8
    v_add_u32 v{vXwr}, s{sT0}, v{vXwr}
    v_mul_u32_u24 v{vPst}, {4*o.rs if o.uspread else o.rs}, v{gh}
    v_mul_u32_u24 v{t0}, {2*o.rs if o.uspread else 4096}, v{ih}
    v_add_u32 v{vPst}, v{t0}, v{vPst}
    v_mul_u32_u24 v{t0}, {o.rs if o.uspread else 2048}, v{gl}
    v_add_u32 v{vPst}, v{t0}, v{vPst}
    v_lshl_add_u32 v{vPst}, v{i7}, 3, v{vPst}
    s_mul_i32 s{sT0}, s{sW}, {8*o.rs}
    v_add_u32 v{vPst}, s{sT0}, v{vPst}
    s_mul_i32 s{sRoff}, s{sH}, {o.rs}
    v_lshlrev_b32 v{vMst}, 4, v{gg}
    v_lshl_add_u32 v{vMst}, v{c}, 2, v{vMst}
    s_lshl_b32 s{sT0}, s{sW}, 11
    v_add_u32 v{vMst}, s{sT0}, v{vMst}
    v_lshl_add_u32 v{vXrd}, v{gg}, 2, v{a}
    v_lshlrev_b32 v{vXrd}, 3, v{vXrd}
    v_mul_u32_u24 v{t0}, {XPL}, v{c}
    v_add_u32 v{vXrd}, v{vXrd}, v{t0}
    s_lshl_b32 s{sT0}, s{sW}, 13
    s_add_u32 s{sT0}, s{sT0}, {L_W}
    v_add_u32 v{vWo}, s{sT0}, v{vKrd}
    v_mov_b32 v{t0}, 0xf149f2ca
    v_cmp_gt_u32 vcc, 2, v{gg}
    v_cndmask_b32 v{vMask}, 0, v{t0}, vcc
    v_and_b32 v{t0}, 1, v{a}
    v_cmp_eq_u32 s[{sMaskOdd}:{sMaskOdd+1}], 1, v{t0}
    v_lshrrev_b32 v{t0}, 1, v{a}
    v_lshl_add_u32 v{t0}, v{c}, 1, v{t0}""")
    for d in range(4):
        g(f"v_cmp_eq_u32 s[{sMaskD+2*d}:{sMaskD+2*d+1}], {d}, v{t0}")
    for r, s_ in ((1, sO1), (2, sO2), (3, sO3)):
        g(f"s_add_u32 s{s_}, s{sW}, {r}\ns_and_b32 s{s_}, s{s_}, 3\ns_lshl_b32 s{s_}, s{s_}, 9")
    g(f"s_mov_b32 s{sC}, {f32(CSCALE)}")
    g(f"s_lshl_b32 s{sPoff}, s{sH}, 6")
    g(f"s_lshl_b32 s{sMoff}, s{sH}, 6")
    g(f"""v_and_b32 v{t0}, 1, v{a}
    v_lshl_add_u32 v{t2}, v{gl}, 1, v{t0}
    v_lshrrev_b32 v{vTT}, 1, v{a}
    v_lshlrev_b32 v{vTq}, 5, v{vTT}
    v_lshl_add_u32 v{vTq}, v{c}, 3, v{vTq}
    v_xor_b32 v{t2}, s{sW}, v{t2}
    v_lshl_add_u32 v{vTq}, v{t2}, 6, v{vTq}
    v_lshl_add_u32 v{vTo}, v{t0}, 10, v{vTq}
    v_lshl_add_u32 v{vTq}, v{t0}, 8, v{vTq}
    v_lshl_add_u32 v{vTq}, v{gg}, 10, v{vTq}
    v_lshl_add_u32 v{vTo}, v{gl}, 12, v{vTo}
    v_lshl_add_u32 v{vTo}, v{gh}, 11, v{vTo}
    s_lshl_b32 s{sT0}, s{sW}, 13
    v_add_u32 v{vTo}, s{sT0}, v{vTo}""")
    g(f"""v_mov_b32 v{t1}, 1
    s_cmp_eq_u32 s{sW}, 0
    s_cselect_b64 exec, 1, 0
    s_waitcnt vmcnt(8)
    buffer_atomic_add v{t1}, off, s[{S_DBG}:{S_DBG+3}], 0 offset:4
    s_mov_b64 exec, -1""")
    SN = T+12
    g(f"v_mov_b32 v{SN}, -1")
    g(f"s_add_u32 s{sT0}, s{sRoff}, {WS_PART}")
    for k in range(4): g(f"v_not_b32 v{T+24+k}, v{a}")
    for hf in range(2):
        g(f"buffer_store_dwordx4 {vr(T+24,4)}, v{vQ}, {W}, s{sT0} offen offset:{1024*hf}{SC}")
    g(f"s_add_u32 s{sT0}, s{sMoff}, {WS_M}")
    for sl in range(4):
        g(f"buffer_store_dword v{SN}, v{vMst}, {W}, s{sT0} offen{SC}")
        g(f"s_add_u32 s{sT0}, s{sT0}, 8192")
    if o.hint: g(f"""v_mov_b32 v{t1}, 0
    v_mov_b32 v{t2}, 0
    v_lshlrev_b32 v{t0}, 3, v{l}
    s_lshl_b32 s{sT0}, s{sH}, 12
    s_lshl_b32 s{sT1}, s{sW}, 10
    s_add_u32 s{sT0}, s{sT0}, s{sT1}
    s_add_u32 s{sT0}, s{sT0}, {WS_HINT}
    buffer_store_dwordx2 {vr(t1,2)}, v{t0}, {W}, s{sT0} offen sc1
    buffer_store_dwordx2 {vr(t1,2)}, v{t0}, {W}, s{sT0} offen offset:512 sc1""")
    g(f"""v_lshl_add_u32 v{t0}, v{ih}, 2, v{gg}
    v_lshlrev_b32 v{t0}, 4, v{t0}
    v_lshl_add_u32 v{t0}, v{i7}, 10, v{t0}
    s_lshl_b32 s{sT0}, s{sW}, 8
    buffer_load_dwordx4 {vr(V,4)}, v{t0}, s[{S_A}:{S_A+3}], s{sT0} offen
    buffer_load_dwordx4 {vr(V+4,4)}, v{t0}, s[{S_A}:{S_A+3}], s{sT0} offen offset:128""")
    LA = 3 if o.ofirst else 4
    for n in range(1, LA): dma_chunk(n)
    g(f"s_add_u32 s{sMoff}, s{sMoff}, {WS_M}\ns_add_u32 s{sRoff}, s{sRoff}, {WS_PART}\ns_add_u32 s{sPoff}, s{sPoff}, {WS_PART}")
    for n in range(16):
        mat, cc = order[n]
        base = cbase(n)
        rem = min(LA - 1, 15 - n) * 8 + (2 if n == 15 else 0)
        g(f"s_waitcnt vmcnt({rem})")
        g("s_barrier")
        if o.diag == 10 + n: g("s_memrealtime s[100:101]")
        if o.prof == 3 and n in (0, 3, 7, 11, 15): g(f"s_memrealtime s[{68+2*(1+(n+1)//4)}:{69+2*(1+(n+1)//4)}]")
        if n == 0:
            g(f"""s_cmp_eq_u32 s{sW}, 0
            s_cbranch_scc0 R_noinit
            v_mov_b32 v{t0}, 8
            v_mov_b32 v{t1}, 1
            s_mov_b64 exec, 1
            buffer_atomic_add v{t1}, v{t0}, s[{S_DBG}:{S_DBG+3}], 0 offen
            s_mov_b64 exec, -1
            R_noinit:""")
        if mat == "o":
            for r in range(4):
                k, b = loc[(mat, r)] if r < 2 else ("v", (KX, TMP1)[r-2])
                if r == 0:
                    g(f"v_mul_u32_u24 v{t0}, {4096+128}, v{vTT}")
                    g(f"v_xor_b32 v{t0}, v{t0}, v{vTo}")
                else:
                    g(f"v_xor_b32 v{t0}, {8192*r}, v{vTo}")
                g(f"v_add_u32 v{t0}, {base}, v{t0}")
                for u in range(4):
                    g(f"ds_read_b64_tr_b16 {vr(b + 8*u + 2*cc, 2, k)}, v{t0} offset:{256*u}")
                if r == 1: g("s_waitcnt lgkmcnt(0)")
        else:
            mm_, hh = cc >> 1, cc & 1
            for r in range(4):
                k, b = ploc[(mat, r)]
                if r == 0: g(f"s_lshl_b32 s{sT0}, s{sW}, 13")
                else: g(f"s_lshl_b32 s{sT0}, s{(sO1,sO2,sO3)[r-1]}, 4")
                g(f"s_add_u32 s{sT0}, s{sT0}, {base}")
                g(f"v_add_u32 v{t0}, s{sT0}, v{vTq}")
                if r == 0:
                    g(f"v_lshl_add_u32 v{t0}, v{vTT}, 12, v{t0}")
                    g(f"v_xor_b32 v{t1}, 4096, v{t0}")
                for x in range(2):
                    for dd in range(2):
                        ad, off = (t0, 4096*x + 512*dd) if r else ((t0, t1)[x], 512*dd)
                        g(f"ds_read_b64_tr_b16 {vr(b + 8*(2*mm_+x) + 4*hh + 2*dd, 2, k)}, v{ad} offset:{off}")
                if r == 1: g("s_waitcnt lgkmcnt(0)")
        g("s_waitcnt lgkmcnt(0)")
        g("s_barrier")
        fa_, fr_, fv_ = AQ, AQ+1, AQ+2
        if n == 9:
            g(f"v_mov_b32 v{fa_}, 8\nv_mov_b32 v{fr_}, 32")
            g(f"buffer_load_dword v{fv_}, v{fa_}, s[{S_DBG}:{S_DBG+3}], 0 offen sc1")
        if n == 12:
            g(f"v_cmp_gt_u32 vcc, v{fr_}, v{fv_}\ns_cbranch_vccz R_init_ok")
            roles.spin(g, "R_init", fa_, 0, fr_, fv_, f"s[{S_DBG}:{S_DBG+3}]")
            g(f"""s_lshl_b32 s{sFlB}, s{sH}, 7
            s_add_u32 s{sFlB}, s{sFlB}, {FL_B + 8}
            s_add_u32 s{sFlE}, s{sFlB}, 24
            v_lshlrev_b32 v{fa_}, 2, v{c}
            v_mov_b32 v{fr_}, 1
            buffer_load_dword v{fv_}, v{fa_}, {W}, s{sFlB} offen sc1""")
        if n == 14:
            g(f"v_cmp_gt_u32 vcc, v{fr_}, v{fv_}\ns_cbranch_vccz R_kv0_ok")
            roles.spin(g, "R_kv0", fa_, f"s{sFlB}", fr_, fv_)
            g(f"""s_lshl_b32 s{sKV}, s{sH}, 13
            s_add_u32 s{sT0}, s{sKV}, {WS_KX}
            s_lshl_b32 s{sM0k}, s{sW}, 11
            s_mov_b32 m0, s{sM0k}
            s_nop 0
            buffer_load_dwordx4 v{vQ}, {W}, s{sT0} offen sc1 lds
            buffer_load_dwordx4 v{vQ}, {W}, s{sT0} offen offset:1024 sc1 lds""")
        if n + LA < 16: dma_chunk(n + LA)
        assert o.ofirst
        wb_ = {3: [(KX, 2), (TMP1, 3)], 14: [(KX, 0)], 15: [(TMP1, 1)]}.get(n, [])
        for src, sl in wb_:
            g(f"v_add_u32 v{t0}, {sl*32768}, v{vWo}")
            for f in range(8):
                g(f"ds_write_b128 v{t0}, {vr(src+4*f,4)} offset:{1024*f}")
            g("s_waitcnt lgkmcnt(0)")
    def lds_w(mat, cc, f, hf):
        return slot[(mat, cc)]*32768 + f*2048 + hf*1024
    roles.tstamp(g, o, 1, t0)
    roles.tstamp(g, o, 2, t0)
    if o.diag == 2: g("s_memrealtime s[100:101]")
    for k in (0, 2): g(f"v_mov_b64 {vr(M(0)+k,2)}, {vr(V+k,2)}\nv_mov_b64 {vr(M(2)+k,2)}, {vr(V+4+k,2)}")
    g(f"""s_mov_b32 s{sStep}, 0
    s_mov_b32 s{sFailA}, 0
    s_mov_b32 s{sMr}, {WS_M}""")
    o.stamp_names = list(o.sel)
    def stamp(name="", lvl=1):
        if (o.stamps >= lvl and not o.sel) or name in o.sel:
            if name not in o.stamp_names: o.stamp_names.append(name)
            n = o.stamp_names.index(name)
            assert n < 13
            g(f"{'s_memrealtime' if o.rt else 's_memtime'} s[{sSt+2*n}:{sSt+2*n+1}]")
    X = M(0); SX1 = M(4); PX = M(5); PM = M(6); O0 = M(7); O1 = M(8); LL = M(9); ONES = M(10); VV = M(11)
    vW2 = PM + 2; RC = PM + 3; E = PX
    WOL = {(2,0): M(12), (3,0): M(14), (2,1): KX, (3,1): KX+8, (2,2): KX+16, (3,2): KX+24, (2,3): M(0), (3,3): M(2)}
    RS = [(M(12), M(13)), (M(14), M(15)), (M(6), M(7))]; SEL = M(9); DD = M(10); CK = M(8)
    PS = [(M(12), M(13)), (M(14), M(15)), (M(10), M(11))]; vPf, vSn = M(9), M(9)+1
    SM, SX0 = AQ, AK
    OA = [AQ, AK, SX1, AV]; OF = [O0, O1, LL, PX]
    def wq0():  return [f"ds_read_b128 {vr(KX+4*f,4)}, v{vWo} offset:{lds_w('q',0,f>>1,f&1)}" for f in range(8)]
    def zacc(): return [f"v_mov_b64 {vr(AQ+k,2)}, 0" for k in range(0, 12, 2)]
    def pf_addr(w):
        L = [f"v_lshlrev_b32 v{vPf}, 3, v{vKrd}", f"v_and_b32 v{vPf}, 0x7ff, v{vPf}", f"v_mov_b32 v{vSn}, -1"]
        if w in (0, None):
            L += [f"s_sub_u32 s{sT0}, s{sFlB}, s{sVn}", "s_mov_b64 exec, 0xf0000",
                  f"v_lshrrev_b32 v{vPf}, 5, v{vPf}", f"v_add_u32 v{vPf}, s{sT0}, v{vPf}", "s_mov_b64 exec, -1",
                  f"v_writelane_b32 v{vJ}, s{sStep}, 20"]
        if o.hint and w in (1, None):
            L += [f"s_sub_u32 s{sT0}, s{sHs}, s{sVn}", f"s_sub_u32 s{sT0}, s{sT0}, s{sH}", f"s_add_u32 s{sT0}, s{sT0}, 2048", "s_mov_b64 exec, 0x7fff0000",
                  f"v_add_u32 v{vPf}, s{sT0}, v{vPf}", "s_mov_b64 exec, -1"]
        return L
    def step_scalars():
        return [x.strip() for x in (f"""s_xor_b32 s{sPh}, s{sStep}, s{sH}
        s_and_b32 s{sPh}, s{sPh}, 1
        s_lshl_b32 s{sT3}, s{sH}, 13
        s_add_u32 s{sT0}, s{sStep}, 3
        s_and_b32 s{sT0}, s{sT0}, 3
        s_lshl_b32 s{sMz}, s{sT0}, 13
        s_add_u32 s{sMz}, s{sMz}, s{sMoff}
        s_add_u32 s{sEx}, s{sKV}, {WS_EX}
        s_add_u32 s{sVc}, s{sKV}, {WS_VX}
        s_add_u32 s{sT1}, s{sStep}, 1
        s_min_u32 s{sT1}, s{sT1}, {0 if o.nofar else 63}
        s_lshl_b32 s{sT1}, s{sT1}, 18
        s_add_u32 s{sKV}, s{sT1}, s{sT3}
        s_add_u32 s{sKn}, s{sKV}, {WS_KX}
        s_lshl_b32 s{sT2}, s{sW}, 11
        s_add_u32 s{sVn}, s{sKV}, s{sT2}
        s_add_u32 s{sVn}, s{sVn}, {WS_VX}
        s_xor_b32 s{sM0k}, s{sM0k}, 8192
        s_mov_b32 m0, s{sM0k}
        s_cmp_eq_u32 s{sStep}, {o.nsteps-1}
        s_cselect_b32 s{sRange}, 0, {0 if o.force_slow else 48 << 23}""").split("\n")] + ([f"s_lshl_b32 s{sT0}, s{sStep}, 11", f"s_add_u32 s{sT0}, s{sT0}, {WS_HINT}", f"s_add_u32 s{sHs}, s{sT0}, s{sH}", f"s_add_u32 s{sT0}, s{sT0}, s{sCu}",
            f"s_add_u32 s{sHp}, s{S_WS}, s{sT0}", f"s_addc_u32 s{sHp+1}, s{S_WS+1}, 0"] if o.hint else [])
    if o.hint: g(f"s_getreg_b32 s{sCu}, hwreg(HW_REG_HW_ID, 8, 1)\ns_lshl_b32 s{sCu}, s{sCu}, 6")
    for x in wq0() + zacc() + step_scalars(): g(x)
    g(f"s_add_u32 s{sPw}, s{sPoff}, 4096")
    g(f"s_mov_b32 s{sMaskLo8}, 0x000f000f\ns_mov_b32 s{sMaskLo8+1}, 0x000f000f")
    if o.stamps: g(f"s_mov_b32 s{sDump}, {WS_DBG + 512*1024}")
    g("s_waitcnt vmcnt(0) lgkmcnt(0)")
    g("s_barrier")
    for w in range(4):
        if w < 3: g(f"s_cmp_eq_u32 s{sW}, {w}\ns_cbranch_scc0 R_first{w}")
        for x in pf_addr(w): g(x)
        g(f"s_branch R{w}_loop")
        if w < 3: g(f"R_first{w}:")
    def smf(acc, A, B): g(f"v_smfmac_f32_16x16x64_bf16 {vr(acc,4)}, {A}, {B}, v{vIdx}")
    def mf(D, A, B, C, op="v_mfma_f32_16x16x32_bf16"): g(f"{op} {vr(D,4)}, {A}, {B}, {C}")
    m16 = "v_mfma_f32_16x16x16_bf16"
    def wb(mat, t):
        r, f = t >> 2, t & 3
        if (mat, r) in slot: return vr(KX + 8*f, 8)
        return wfrag(mat, r, f)
    ACC = {"q": AQ, "k": AK, "v": AV}
    def gm(mat, t, *fill):
        smf(ACC[mat], vr(M(t),4), wb(mat, t))
        stamp(f"{mat}{t}", 9)
        for x in fill: g(x)
    def dpp(dst, src): return f"v_mov_b32_dpp v{dst}, v{src} row_ror:8 row_mask:0xf bank_mask:0xf"
    def wkr(n): return f"ds_read_b128 {vr(KX+4*n,4)}, v{vWo} offset:{lds_w('k',3,n>>1,n&1)}"
    def kxr(n): return f"ds_read_b128 {vr(KX+4*n,4)}, v{vKrd} offset:{L_KB+1024*n}"
    def xr(b, x): return f"ds_read_b64_tr_b16 {vr(X+4*b+2*x,2)}, v{vXrd} offset:{L_XB+(32*b+16*x)*8}"
    def wor(r, n): return f"ds_read_b128 {vr(WOL[(r, n>>1)]+4*(n&1),4)}, v{vW2} offset:{lds_w('o',r,n>>1,n&1)-65536}"
    def cvt(d, a_, b_): return f"v_cvt_pk_bf16_f32 v{d}, v{a_}, v{b_}"
    def ex(r): return f"v_exp_f32 v{r}, v{r}"
    xb = lambda b: vr(X+4*b, 4)
    def ld2(regs, so):
        return [f"buffer_load_dwordx4 {vr(regs[0],4)}, v{vQ}, {W}, s{so} offen sc1", f"buffer_load_dwordx4 {vr(regs[1],4)}, v{vQ}, {W}, s{so} offen offset:1024 sc1"]
    def issue2(regs, so):
        for x in ld2(regs, so): g(x)
    def check_part(regs, n):
        r0, r1 = regs
        g(f"s_waitcnt vmcnt({n+1})")
        mf(DD, vr(SEL,4), vr(r0,4), 0)
        g(f"v_bitop3_b32 v{CK}, v{r0}, v{r0+2}, v{CK+2} bitop3:0x7e")
        g(f"s_waitcnt vmcnt({n})")
        mf(DD, vr(SEL,4), vr(r1,4), vr(DD,4))
        g(f"v_bitop3_b32 v{CK+1}, v{r1}, v{r1+2}, v{CK+2} bitop3:0x7e")
        g(f"v_bitop3_b32 v{CK}, v{CK}, v{CK+1}, 1 bitop3:0xa8")
        g(f"v_cmp_ne_u32 vcc, 0, v{CK}")
    def check_m(regs, n):
        r0, r1 = regs
        g(f"s_waitcnt vmcnt({n+1})")
        g(f"v_max3_u32 v{CK}, v{r0}, v{r0+1}, v{r0+2}")
        g(f"v_max_u32 v{CK}, v{CK}, v{r0+3}")
        g(f"s_waitcnt vmcnt({n}) lgkmcnt(0)")
        g(f"v_max3_u32 v{CK}, v{CK}, v{r1}, v{r1+1}")
        g(f"v_max3_u32 v{CK}, v{CK}, v{r1+2}, v{r1+3}")
        g(f"v_cmp_eq_u32 vcc, -1, v{CK}")
        for k in (0, 2): g(f"v_mov_b64 {vr(M(0)+k,2)}, {vr(r0+k,2)}")
        for k in (0, 2): g(f"v_mov_b64 {vr(M(2)+k,2)}, {vr(r1+k,2)}")
    def post_owr():
        g(dpp(O0+2, O0)); g(dpp(O0+3, O0+1))
        for r_ in (AK, AK+2, SX1, SX1+2, AV, AV+2): g(f"v_mov_b64 {vr(r_,2)}, 0")
    exs = "" if o.noexp else " sc1"

    def loop(w):
        N = f"R{w}"
        def mrd(t): return f"ds_read_b128 {vr(M(t),4)}, v{vMrd} offset:{L_MB + ((w + (t>>2)) & 3)*2048 + 512*(t&3)}"
        nlate = o.late[w]
        late = (zacc() + wq0())[14-nlate:]
        g(".p2align 4")
        g(f"{N}_top:")
        work = step_scalars()
        if w == 0:
            work += [f"s_add_u32 s{sReq}, s{sStep}, 3", f"s_lshr_b32 s{sReq}, s{sReq}, 1", f"s_min_u32 s{sReq}, s{sReq}, 32",
                     f"v_cmp_gt_u32 vcc, s{sReq}, v{vJ}", f"s_and_b32 s{sT0}, vcc_lo, 0xf0000", "s_cbranch_scc1 R_kvwait", "R_kvok:"]
        work += pf_addr(w) + late
        if o.stamps:
            work += ["s_waitcnt lgkmcnt(0)", f"s_lshl_b32 s{sT0}, s{sH}, 8", f"s_add_u32 s{sT0}, s{sT0}, s{sStep}", f"s_lshl_b32 s{sT0}, s{sT0}, 7",
                     f"s_add_u32 s{sDump}, s{sT0}, {WS_DBG + 1024*1024 + w*64*128 - 128 - 256*w}"]
            work += [f"v_writelane_b32 v{vJ}, s{sSt+2*n}, {32+n}" for n in range(len(o.sel) if o.sel else 13)]
            work += [f"v_writelane_b32 v{vJ}, s{sFailA}, 46", f"v_writelane_b32 v{vJ}, s{sBudget}, 47"]
        pp = [int(x) for x in o.posm[w].split("/")]; KP = len(pp)
        FILL = f"v_mov_b32 v{M(4)}, v{M(4)}" if o.warm else "s_nop 0"
        if o.warm:
            w2 = []
            for k, x in enumerate(work):
                w2.append(x)
                if k < 21 and k % 3 == 2: w2.append(FILL)
            work = w2
        while len(work) < pp[-1] + o.fb[w]: work.append(FILL)
        if o.b0 or o.hb:
            for x in work[:o.early[w]]: g(x)
            work = work[o.early[w]:]
            g("s_barrier")
            stamp("hint")
            while len(work) < pp[-1] + o.fb[w]: work.append(FILL)
        inex = False; pend = []
        for k in range(len(work) + 1):
            pend += [j for j in range(KP) if pp[j] == k]
            if not inex:
                for j in pend: issue2(PS[j], sMr)
                pend = []
            if k < len(work):
                g(work[k])
                if work[k].startswith("s_mov_b64 exec"): inex = not work[k].endswith("-1")
        g(f"{N}_poll:")
        for j in range(KP):
            check_m(PS[j], 2*(KP-1))
            if j < KP - 1:
                g(f"s_cbranch_vccz {N}_loop")
                issue2(PS[j], sMr)
                if o.stamps: g(f"s_sub_u32 s{sBudget}, s{sBudget}, 1")
        g(f"s_cbranch_vccnz {N}_pollB")
        g(f"{N}_loop:")
        stamp("start")
        far = [f"buffer_load_dwordx4 v{vQ}, {W}, s{sKn} offen sc1 lds", f"buffer_load_dwordx4 v{vQ}, {W}, s{sKn} offen offset:1024 sc1 lds",
               f"buffer_load_dword v{vJ}, v{vPf}, {W}, s{sVn} offen sc1"]
        pf = [f"s_mov_b64 exec, {'0xfffff' if w == 0 else '0x7fffffff' if (w == 1 and o.hint) else '0xffff'}", far[2], "s_mov_b64 exec, -1"]
        mz = f"buffer_store_dword v{vSn}, v{vMst}, {W}, s{sMz} offen{SC}"
        vld = [f"buffer_load_dwordx4 {vr(V+4*k,4)}, v{vQ}, {W}, s{sVc} offen offset:{1024*k} sc1" for k in range(2)]
        gm("q", 0, f"ds_write_b128 v{vQ}, {vr(M(0),4)} offset:{L_MB}", *([f"s_waitcnt vmcnt({2*KP-2})"] if o.opt else []))
        gm("q", 2, f"ds_write_b128 v{vQ}, {vr(M(2),4)} offset:{L_MB+1024}")
        if o.opt:
            gm("k", 0, dpp(M(1), M(0)), dpp(M(1)+1, M(0)+1), f"v_cmp_u_f32 vcc, v{AQ}, v{AQ+1}")
            gm("k", 2, f"v_cmp_u_f32 s[{sT2}:{sT3}], v{AQ+2}, v{AQ+3}", dpp(M(1)+2, M(0)+2))
            gm("v", 0, dpp(M(1)+3, M(0)+3))
            gm("v", 2, f"s_or_b64 vcc, vcc, s[{sT2}:{sT3}]", f"s_cbranch_vccnz {N}_fix")
            g(f"{N}_fixret:")
            gm("q", 1, vld[0], vld[1], "s_waitcnt lgkmcnt(0)", "s_barrier")
            stamp("B1", 2)
            g(mrd(4))
            gm("k", 1, mrd(5), dpp(M(3), M(2)), dpp(M(3)+1, M(2)+1))
            gm("v", 1, mrd(6), dpp(M(3)+2, M(2)+2), dpp(M(3)+3, M(2)+3), *pf)
            gm("q", 3, mrd(7))
        else:
            gm("k", 0, vld[0], dpp(M(1), M(0)))
            gm("k", 2, dpp(M(1)+1, M(0)+1), dpp(M(1)+2, M(0)+2))
            gm("v", 0, vld[1], dpp(M(1)+3, M(0)+3))
            gm("v", 2, dpp(M(3), M(2)), dpp(M(3)+1, M(2)+1))
            gm("q", 1, "s_waitcnt lgkmcnt(0)", "s_barrier")
            stamp("B1", 2)
            g(mrd(4))
            gm("k", 1, mrd(5), dpp(M(3)+2, M(2)+2), dpp(M(3)+3, M(2)+3))
            gm("v", 1, *pf)
            gm("q", 3, mrd(6), mrd(7))
        if o.pmask > 1: gm("k", 3, mrd(8), f"s_mov_b64 exec, s[{sMaskLo8}:{sMaskLo8+1}]", mz, "s_mov_b64 exec, -1")
        else: gm("k", 3, mrd(8), mz)
        gm("v", 3, mrd(9), "s_waitcnt lgkmcnt(5)" + (" vmcnt(4)" if KP > 2 else ""))
        seq = []
        for m_ in range(4): seq += [("q", 4+3*m_), ("q", 5+3*m_), ("q", 6+3*m_), ("k", 4+m_)]
        seq += [("k", t) for t in range(8, 16)]
        ds = [mrd(t) for t in range(10, 16)] + [wkr(n) for n in range(8)]
        issued = 6
        extra = {
          0: [far[0]], 2: [far[1]],
          16: [f"v_mul_f32 v{AQ}, s{sC}, v{AQ}"], 17: [f"v_mul_f32 v{AQ+1}, s{sC}, v{AQ+1}"],
          18: [f"v_mul_f32 v{AQ+2}, s{sC}, v{AQ+2}"], 19: ["s_waitcnt lgkmcnt(0)", f"v_mul_f32 v{AQ+3}, s{sC}, v{AQ+3}"],
          20: [cvt(AQ, AQ, AQ+1)], 21: [kxr(0), cvt(AQ+1, AQ+2, AQ+3)],
          22: [f"ds_write_b64 v{vXwr}, {vr(AQ,2)} offset:{L_XB}"], 23: [kxr(1), f"v_mov_b32 v{AQ}, v{vMask}"],
        }
        nyoung = 6
        if w == 0:
            extra[14] = ["s_mov_b64 exec, 0x100000", f"buffer_store_dword v{vJ}, off, {W}, s{sFlE} sc1", "s_mov_b64 exec, -1"]; nyoung += 1
        if o.stamps:
            extra[15] = ["s_mov_b64 exec, 0xffff", "s_lshl_b64 exec, exec, 32", f"buffer_store_dword v{vJ}, v{vXwr}, {W}, s{sDump} offen", "s_mov_b64 exec, -1"]; nyoung += 1
        for n, (mat, t) in enumerate(seq):
            fill = []
            nxt = seq[n+1] if n+1 < len(seq) else None
            if nxt and nxt[0] == "q":
                wv = " vmcnt(5)" if n == 1 else ""
                fill.append(f"s_waitcnt lgkmcnt({issued - (nxt[1] - 3)}){wv}")
            if n < len(ds): fill.append(ds[n]); issued += 1
            fill += extra.get(n, [])
            gm(mat, t, *fill)
        stamp("kdone", 2)
        gm("v", 5, f"v_mov_b32 v{AQ+1}, v{vMask}", f"v_mov_b64 {vr(AQ+2,2)}, {vr(AQ,2)}", cvt(E, AK, AK+1), cvt(E+1, AK+2, AK+3))
        gm("v", 4, f"ds_write_b64 v{vXwr}, {vr(E,2)} offset:{L_XB+2*XPL}")
        ek = f"buffer_store_dwordx2 {vr(E,2)}, v{vXwr}, {W}, s{sEx} offen{exs}"
        ev = f"buffer_store_dwordx2 {vr(VV+2,2)}, v{vXwr}, {W}, s{sEx} offen offset:{2*XPL}{exs}"
        gm("v", 10, ek)
        gm("v", 11, kxr(2), f"v_mov_b32 v{ONES}, 0x3f803f80")
        gm("v", 6, kxr(3), f"v_mov_b32 v{ONES+1}, 0x3f803f80")
        gm("v", 12, kxr(4), f"v_add_u32 v{vW2}, 0x10000, v{vWo}")
        gm("v", 13, "s_waitcnt lgkmcnt(3)", "s_barrier")
        stamp("B2")
        g(xr(0,0)); g(xr(0,1))
        gm("v", 14, xr(1,0), xr(1,1))
        gm("v", 15, xr(2,0), xr(2,1))
        gm("v", 7, xr(3,0), xr(3,1))
        gm("v", 8, kxr(5), f"v_mov_b64 {vr(ONES+2,2)}, {vr(ONES,2)}")
        gm("v", 9, kxr(6), "s_waitcnt lgkmcnt(6)")
        sw = [f"v_permlane32_swap_b32 v{VV+k}, v{VV+2+k}" for k in range(2)]
        sfill = {
          0: [kxr(7), wor(2, 0)],
          1: ["s_waitcnt lgkmcnt(4)", cvt(VV+2, AV, AV+1), cvt(VV+3, AV+2, AV+3)],
          2: [ev],
          3: [sw[0]], 4: [sw[1]],
          5: [ex(SM)], 6: [ex(SM+1)], 7: ["s_waitcnt lgkmcnt(1)", ex(SM+2)], 8: [ex(SM+3)],
          9: [ex(SX0)], 10: [ex(SX0+1)], 11: [ex(SX0+2), ex(SX0+3)],
        }
        n = 0
        for D, A_, C0 in ((SM, xb, None), (SX0, lambda b: vr(KX+4*b,4), "0"), (SX1, lambda b: vr(KX+16+4*b,4), "0")):
            for b in range(4):
                mf(D, A_(b), xb(b), C0 if (b == 0 and C0) else vr(D,4))
                stamp(f"S{n}", 9)
                for x in sfill.get(n, []): g(x)
                n += 1
        stamp("Sissued", 3)
        g(cvt(PM, SM, SM+1)); g(cvt(PM+1, SM+2, SM+3))
        g(cvt(PX, SX0, SX0+1)); g(cvt(PX+1, SX0+2, SX0+3))
        mf(LL, vr(ONES,2), vr(PM,2), 0, m16); g(ex(SX1))
        mf(O0, vr(VV,2), vr(PM,2), 0, m16); g(ex(SX1+1))
        mf(O1, vr(VV+2,2), vr(PM,2), 0, m16); g(ex(SX1+2))
        g(ex(SX1+3))
        g(cvt(PX+2, SX1, SX1+1)); g(cvt(PX+3, SX1+2, SX1+3))
        g(f"s_waitcnt vmcnt({nyoung})")
        g(f"v_mov_b64 {vr(AQ,2)}, 0")
        mf(LL, vr(ONES,4), vr(PX,4), vr(LL,4)); g(wor(2, 1)); g(wor(3, 0))
        mf(O0, vr(V,4), vr(PX,4), vr(O0,4)); g(wor(3, 1)); g(wor(2, 2))
        mf(O1, vr(V+4,4), vr(PX,4), vr(O1,4))
        stamp("PV", 3)
        g(f"v_rcp_f32 v{RC}, v{LL}")
        g(f"v_mov_b64 {vr(AQ+2,2)}, 0")
        g(f"v_mul_f32 v{O0}, v{RC}, v{O0}")
        g(f"v_mov_b32_dpp v{RC}, v{RC} row_ror:8 row_mask:0xf bank_mask:0xc")
        for k in range(1, 4): g(f"v_mul_f32 v{O0+k}, v{RC}, v{O0+k}")
        for k in range(4): g(f"v_mul_f32_dpp v{O0+k}, v{O1+k}, v{RC} row_ror:8 row_mask:0xf bank_mask:0xc")
        g(cvt(O0, O0, O0+1)); g(cvt(O0+1, O0+2, O0+3))
        g(f"ds_write_b64 v{vOwr}, {vr(O0,2)} offset:{L_OB}")
        stamp("owr")
        g(f"v_subrev_u32 v{RC}, {(127-24) << 23}, v{RC}")
        g(f"v_cmp_le_u32 vcc, s{sRange}, v{RC}")
        post_owr()
        g(f"v_xor_b32 v{vKrd}, 8192, v{vKrd}")
        g("s_cbranch_vccnz R_slow")
        g(f"{N}_slowret:")
        HS = o.hint and w == (o.hbw if o.hb else 3); HP = o.hint and w == o.hw
        if HS: g(f"v_bfe_u32 v{V}, v{vKrd}, 4, 5"); g(f"v_lshlrev_b32 v{V}, 6, v{V}"); g(f"v_mov_b32 v{V+1}, -1")
        if HP: g(f"s_mov_b64 s[{sHv}:{sHv+1}], 0")
        nprobe = [0]
        def probe():
            if not HP or nprobe[0] >= o.hint: return ""
            nprobe[0] += 1
            return f"s_load_dwordx8 s[{sHv}:{sHv+7}], s[{sHp}:{sHp+1}], {128*(nprobe[0]-1)}"
        smf(OA[0], vr(O0,4), wfrag("o",0,0))
        g("s_waitcnt lgkmcnt(0)")
        g("s_barrier")
        stamp("B3", 2)
        for r in range(1, 4): g(f"ds_read_b128 {vr(OF[r],4)}, v{vMrd} offset:{L_OB + 512*(w ^ r)}")
        hst = [f"s_mov_b64 exec, {(1 << (2*o.hint)) - 1}", f"buffer_store_byte v{V+1}, v{V}, {W}, s{sHs} offen", "s_mov_b64 exec, -1"]
        smf(OA[1], vr(O0,4), wfrag("o",0,1))
        if HS and not o.hb and o.hpos == 1:
            for x in hst: g(x)
        smf(OA[2], vr(O0,4), wfrag("o",0,2)); g(wor(2, 3))
        smf(OA[3], vr(O0,4), wfrag("o",0,3)); g(wor(3, 2)); g("s_waitcnt lgkmcnt(4)")
        def wo(r, u): return wfrag("o",1,u) if r == 1 else vr(WOL[(r, u)], 8)
        pa = o.posa[w].split("/"); KA = len(pa)
        vm = []
        def emit(x):
            if x.startswith("buffer_"): vm.append(x)
            g(x)
        def wm(r, u, *fill):
            smf(OA[u], vr(OF[r],4), wo(r, u))
            stamp(f"w{r}{u}", 9)
            if HS and not o.hb and o.hpos == 10*r + u:
                for x in hst: emit(x)
            for key, regs in zip(pa, RS):
                if key == f"w{r}{u}":
                    for x in ld2(regs, sRoff): emit(x)
            for x in fill: emit(x)
        def pst(u): return f"buffer_store_dwordx2 {vr(OA[u],2)}, v{vPst}, {W}, s{sPoff if u < 2 else sPw} offen offset:{2048*(u&1)}{SC}"
        def pcv(u): return [cvt(OA[u], OA[u], OA[u]+1), cvt(OA[u]+1, OA[u]+2, OA[u]+3), f"v_and_or_b32 v{OA[u]}, v{OA[u]}, -2, s{sPh}"]
        wm(1, 0, wor(3, 3), "s_waitcnt lgkmcnt(4)")
        wm(2, 0, wor(2, 4), "s_waitcnt lgkmcnt(4)")
        wm(3, 0, wor(2, 5), wor(3, 4))
        wm(1, 1, wor(3, 5), wor(2, 6), "s_waitcnt lgkmcnt(5)", *pcv(0))
        wm(2, 1, pst(0))
        wm(3, 1, wor(2, 7), wor(3, 6))
        wm(1, 2, f"s_add_u32 s{sStep}, s{sStep}, 1", wor(3, 7), "s_waitcnt lgkmcnt(4)")
        wm(2, 2, f"s_and_b32 s{sT0}, s{sStep}, 3", f"s_lshl_b32 s{sT0}, s{sT0}, 13", *pcv(1))
        wm(3, 2, f"s_add_u32 s{sMw}, s{sT0}, s{sMoff}", pst(1))
        wm(1, 3, f"s_add_u32 s{sMr}, s{sT0}, {WS_M}", "s_waitcnt lgkmcnt(0)")
        pa_probe = (lambda: "") if o.hb else probe
        wm(2, 3, pa_probe(), *pcv(2))
        wm(3, 3, pst(2))
        g(pa_probe())
        sel = [f"v_mov_b32 v{DD}, 0x3f80", f"v_cndmask_b32 v{DD}, v{DD}, 1.0, s[{sMaskOdd}:{sMaskOdd+1}]"]
        sel += [f"v_cndmask_b32 v{SEL+d}, 0, v{DD}, s[{sMaskD+2*d}:{sMaskD+2*d+1}]" for d in range(4)]
        for x in sel[:4]: g(x)
        for x in pcv(3): g(x)
        g(pa_probe())
        for key, regs in zip(pa, RS):
            if key == "b3":
                for x in ld2(regs, sRoff): emit(x)
        emit(pst(3))
        stamp("pst")
        pre = sel[4:] + [f"v_lshrrev_b32 v{CK+2}, 6, v{vKrd}", f"v_xnor_b32 v{CK+2}, s{sStep}, v{CK+2}"] + (zacc() + wq0())[:14-nlate]
        def hspin():
            while nprobe[0] < o.hint + o.hextra:
                x = probe()
                if not x: nprobe[0] += 1
                g(x)
                g(f"s_and_b64 s[{sT0}:{sT1}], s[{sHv}:{sHv+1}], s[{sHv+2}:{sHv+3}]")
                g(f"s_and_b64 s[{sT2}:{sT3}], s[{sHv+4}:{sHv+5}], s[{sHv+6}:{sHv+7}]")
                g(f"s_nand_b64 s[{sT0}:{sT1}], s[{sT0}:{sT1}], s[{sT2}:{sT3}]")
                g(f"s_cbranch_scc0 {N}_top")
        if o.hint and not o.hb:
            if HP:
                while nprobe[0] < o.hint + o.hextra:
                    x = probe()
                    if not x: nprobe[0] += 1
                    g(x)
                    g(f"s_and_b64 s[{sT0}:{sT1}], s[{sHv}:{sHv+1}], s[{sHv+2}:{sHv+3}]")
                    g(f"s_and_b64 s[{sT2}:{sT3}], s[{sHv+4}:{sHv+5}], s[{sHv+6}:{sHv+7}]")
                    g(f"s_nand_b64 s[{sT0}:{sT1}], s[{sT0}:{sT1}], s[{sT2}:{sT3}]")
                    g(f"s_cbranch_scc0 {N}_hint")
                g(f"{N}_hint:")
            else:
                while len(pre) > 8 - min(nlate, 8) and not pre[0].startswith("ds_"): g(pre.pop(0))
            g("s_barrier")
            stamp("hint")
        while len(pre) < max(int(key[1:].split("v")[0]) if key[0] == "p" else 0 for key in pa) + o.fa[w]: pre.append(FILL)
        for k in range(len(pre) + 1):
            for key, regs in zip(pa, RS):
                if key[0] == "p" and int(key[1:].split("v")[0]) == k:
                    if "v" in key:
                        j = vm.index(pst(int(key.split("v")[1])))
                        g(f"s_waitcnt vmcnt({len(vm) - 1 - j})")
                    if regs is RS[0]: stamp("rgo")
                    for x in ld2(regs, sRoff): emit(x)
            if k < len(pre): g(pre[k])
        if HS and o.hb:
            g(f"s_waitcnt vmcnt({len(vm) - 1 - vm.index(pst(o.hbv))})")
            for x in hst: emit(x)
        nR = [len(vm) - 1 - vm.index(ld2(RS[j], sRoff)[1]) + 2*j for j in range(KA)]
        for j in range(KA):
            check_part(RS[j], nR[j])
            if j < KA - 1:
                g(f"s_cbranch_vccz {N}_redok")
                issue2(RS[j], sRoff)
                if o.stamps: g(f"s_add_u32 s{sFailA}, s{sFailA}, 1")
        g(f"s_cbranch_vccnz {N}_red2")
        g(f"{N}_redok:")
        stamp("rok", 9)
        if o.hb and o.hbpre: g(probe())
        for sh in (8, 4):
            for k in range(2): g(f"v_add_f32_dpp v{DD+k}, v{DD+k}, v{DD+k} row_ror:{sh} row_mask:0xf bank_mask:0xf")
        g(cvt(DD, DD, DD+1))
        if o.pmask: g(f"s_mov_b64 exec, s[{sMaskLo8}:{sMaskLo8+1}]")
        g(f"buffer_store_dword v{DD}, v{vMst}, {W}, s{sMw} offen{SC}")
        if o.pmask: g("s_mov_b64 exec, -1")
        stamp("pub")
        if o.hb and HP: hspin()
        g(f"s_branch {N}_top")
        g(f"{N}_red2:")
        for j in range(KA):
            issue2(RS[(j-1) % KA], sRoff)
            g(f"s_add_u32 s{sFailA}, s{sFailA}, 1")
            check_part(RS[j], 2*(KA-1))
            g(f"s_cbranch_vccz {N}_redok")
        g(f"s_cmp_lt_u32 s{sFailA}, 0x40000")
        g(f"s_cbranch_scc1 {N}_red2")
        g("s_endpgm")
        g(f"{N}_pollB:")
        issue2(PS[KP-1], sMr)
        g(f"s_sub_u32 s{sBudget}, s{sBudget}, 1")
        g(f"s_cmp_gt_i32 s{sBudget}, 0")
        g(f"s_cbranch_scc1 {N}_poll")
        g("s_endpgm")
    for w in range(4): loop(w)
    if o.stamps:
        while len(o.stamp_names) < 13: o.stamp_names.append("-")
        o.stamp_names.append("Mok")
    g("R_kvwait:")
    g(f"v_bfe_u32 v{CK}, v{vKrd}, 4, 2\nv_lshlrev_b32 v{CK}, 2, v{CK}\nv_mov_b32 v{CK+1}, s{sReq}")
    roles.spin(g, "R_kv", CK, f"s{sFlB}", CK+1, CK+3)
    g("s_branch R_kvok")
    g("R_slow:")
    g(f"s_cmp_eq_u32 s{sStep}, {o.nsteps-1}")
    g("s_cbranch_scc1 R_done")
    g("s_waitcnt lgkmcnt(0)")
    g(f"v_xor_b32 v{vKrd}, 8192, v{vKrd}")
    for n in range(8): g(kxr(n))
    g(f"v_xor_b32 v{vKrd}, 8192, v{vKrd}")
    g("s_waitcnt lgkmcnt(0)")
    for b in range(4): g(xr(b, 0)); g(xr(b, 1))
    for k in range(4): g(f"v_mov_b32 v{SM+k}, v{vMask}")
    g("s_waitcnt lgkmcnt(0)")
    for D, A_, C0 in ((SX0, lambda b: vr(KX+4*b,4), "0"), (SX1, lambda b: vr(KX+16+4*b,4), "0"), (SM, xb, None)):
        for b in range(4): mf(D, A_(b), xb(b), C0 if (b == 0 and C0) else vr(D,4))
    g(wor(2, 2))
    sregs = [SX0+j for j in range(4)] + [SX1+j for j in range(4)] + [SM+j for j in range(4)]
    mx, mt = O0, O0+1
    g(f"v_max3_f32 v{mx}, v{sregs[0]}, v{sregs[1]}, v{sregs[2]}")
    for k in range(3, 11, 2): g(f"v_max3_f32 v{mx}, v{mx}, v{sregs[k]}, v{sregs[k+1]}")
    g(f"v_max_f32 v{mx}, v{mx}, v{sregs[11]}")
    for sw in ("v_permlane32_swap_b32", "v_permlane16_swap_b32"):
        g(f"v_mov_b32 v{mt}, v{mx}")
        g(f"{sw} v{mx}, v{mt}")
        g(f"v_max_f32 v{mx}, v{mx}, v{mt}")
    for s_ in sregs: g(f"v_sub_f32 v{s_}, v{s_}, v{mx}")
    for s_ in sregs: g(ex(s_))
    for k in range(4): g(cvt(PX+k, sregs[2*k], sregs[2*k+1]))
    for k in range(2): g(cvt(PM+k, sregs[8+2*k], sregs[9+2*k]))
    mf(LL, vr(ONES,4), vr(PX,4), 0); mf(O0, vr(V,4), vr(PX,4), 0); mf(O1, vr(V+4,4), vr(PX,4), 0)
    mf(LL, vr(ONES,2), vr(PM,2), vr(LL,4), m16); mf(O0, vr(VV,2), vr(PM,2), vr(O0,4), m16); mf(O1, vr(VV+2,2), vr(PM,2), vr(O1,4), m16)
    g(f"v_rcp_f32 v{RC}, v{LL}")
    g(f"v_mov_b32_dpp v{RC}, v{RC} row_ror:8 row_mask:0xf bank_mask:0xc")
    for k in range(4): g(f"v_mul_f32 v{O0+k}, v{RC}, v{O0+k}")
    for k in range(4): g(f"v_mul_f32_dpp v{O0+k}, v{O1+k}, v{RC} row_ror:8 row_mask:0xf bank_mask:0xc")
    g(cvt(O0, O0, O0+1)); g(cvt(O0+1, O0+2, O0+3))
    g(f"ds_write_b64 v{vOwr}, {vr(O0,2)} offset:{L_OB}")
    post_owr()
    for k in range(0, 4, 2): g(f"v_mov_b64 {vr(AQ+k,2)}, 0")
    g("s_waitcnt lgkmcnt(0)")
    for w in range(3): g(f"s_cmp_eq_u32 s{sW}, {w}\ns_cbranch_scc1 R{w}_slowret")
    g("s_branch R3_slowret")
    g("R_done:")
    g("s_waitcnt vmcnt(0) lgkmcnt(0)")
    g("s_barrier")
    roles.set_flag(g, sFlE, o.nsteps, vJ, one=True)

def gen(o):
    g = G()
    R = roles
    g(f"s_cmp_ge_u32 s2, 256")
    g("s_cbranch_scc0 K_go")
    g("s_endpgm")
    g("K_go:")
    if o.prof or o.ronly or o.diag:
        g("s_memrealtime s[96:97]")
        g("s_memtime s[100:101]")
    srd(g, S_WS, 96, WS_SIZE); srd(g, S_DBG, 88, 256)
    if o.wpf and not o.ronly:
        for k, off in enumerate((64, 40, 48, 56)): srd(g, 56+4*k, off, 4*MB_)
    g(f"""v_lshrrev_b32 v1, 6, v0
    s_mov_b32 s{sBudget}, 0x40000
    v_readfirstlane_b32 s{sW}, v1
    s_getreg_b32 s3, hwreg(HW_REG_XCC_ID)
    s_and_b32 s3, s3, 7
    s_mul_i32 s20, s3, 24
    s_add_u32 s20, s20, 56
    s_cmp_eq_u32 s3, 0
    s_cselect_b32 s20, 0, s20
    v_mov_b32 v2, 1
    v_mov_b32 v3, 0
    s_cmp_eq_u32 s{sW}, 0
    s_cselect_b64 exec, 1, 0
    s_waitcnt lgkmcnt(0)
    buffer_atomic_add v2, off, s[{S_DBG}:{S_DBG+3}], s20 sc0
    s_mov_b64 exec, -1""")
    if o.wpf and not o.ronly:
        g(f"""s_cmp_eq_u32 s3, 0
        s_cbranch_scc1 K_nopf
        s_lshr_b32 s21, s2, 3
        s_mul_i32 s21, s21, 7
        s_add_u32 s21, s21, s3
        s_sub_u32 s21, s21, 1
        s_lshl_b32 s21, s21, 2
        s_add_u32 s21, s21, s{sW}
        s_mul_i32 s21, s21, 37
        v_and_b32 v4, 63, v0
        v_cmp_gt_u32 vcc, 37, v4
        v_add_u32 v4, s21, v4
        v_lshlrev_b32 v4, 7, v4
        s_barrier
        s_mov_b64 exec, vcc""")
        for k in range(o.wpf): g(f"buffer_load_dword v{250+k}, v4, s[{56+4*k}:{59+4*k}], 0 offen")
        g(f"""s_mov_b64 exec, -1
        s_waitcnt vmcnt({o.wpf})
        s_branch K_got
        K_nopf:""")
    g(f"""s_waitcnt vmcnt(0)
    K_got:
    s_cmp_eq_u32 s{sW}, 0
    s_cbranch_scc0 K_tick
    s_mov_b64 exec, 1
    ds_write_b32 v3, v2
    s_waitcnt lgkmcnt(0)
    s_mov_b64 exec, -1
    K_tick:
    s_barrier
    ds_read_b32 v2, v3
    s_waitcnt lgkmcnt(0)
    v_readfirstlane_b32 s{sH}, v2
    s_cmp_lt_u32 s{sH}, 32
    s_cbranch_scc1 K_role
    s_endpgm
    K_role:""")
    if o.prof == 2:
        g(f"""s_lshl_b32 s20, s3, 5
        s_add_u32 s20, s20, s{sH}
        s_mov_b32 s97, 228
        s_cmp_eq_u32 s20, 159
        s_cselect_b32 s97, 36, s97
        s_cmp_eq_u32 s20, 0
        s_cselect_b32 s97, 8, s97
        s_cmp_eq_u32 s{sW}, 0
        s_cselect_b32 s97, s97, 228
        v_mov_b32 v254, s96
        s_cmp_lt_u32 s97, 64
        s_cselect_b64 exec, 1, 0
        buffer_store_dword v254, off, s[{S_DBG}:{S_DBG+3}], s97 sc1
        s_mov_b64 exec, -1""")
    elif o.prof:
        g(f"""s_lshl_b32 s20, s3, 5
        s_add_u32 s20, s20, s{sH}
        s_lshl_b32 s20, s20, 5
        v_mov_b32 v254, s96
        s_add_u32 s97, s20, {WS_DBG}
        s_mov_b64 exec, 1
        buffer_store_dword v254, off, {W}, s97
        s_mov_b64 exec, -1""")
    if o.dev and o.ronly:
        g(f"""s_cmp_lt_u32 s{sH}, 4
        s_cbranch_scc0 K_x
        s_lshl_b32 s3, s3, 2
        s_add_u32 s{sH}, s{sH}, s3
        s_branch R_entry
        K_x:
        s_endpgm""")
    g(f"""s_cmp_eq_u32 s3, 0
    s_cbranch_scc1 R_entry""")
    if o.ronly:
        g("s_endpgm")
    else:
        g(f"""s_sub_u32 s3, s3, 1
        s_lshl_b32 s3, s3, 5
        s_add_u32 s{R.sK}, s3, s{sH}
        v_and_b32 v{R.vL}, 63, v0""")
        R.gemm_setup(g, o, 80)
        R.gen_gemm(g, o)
        g(f"""s_cmp_eq_u32 s{R.sPhase}, 3
        s_cbranch_scc0 W_next
        s_endpgm
        W_next:
        s_cmp_ge_u32 s{R.sK}, 192
        s_cbranch_scc1 FA_entry""")
        R.gen_att(g, o)
        g(f"s_cmp_ge_u32 s{R.sK}, 128\ns_cbranch_scc1 W_a3")
        R.gen_fg(g, o)
        R.gen_fa(g, o)
    gen_R(g, o)
    R.tstamp(g, o, 6)
    if o.prof == 3:
        g("s_mov_b64 exec, 1\ns_add_u32 s97, s97, 65536")
        for k in range(6): g(f"v_mov_b32 v1, s{68+2*k}\nbuffer_store_dword v1, off, {W}, s97 offset:{4*k}")
    if o.diag:
        if o.diag == 3: g("s_memrealtime s[100:101]")
        if o.diag == 1: g("s_mov_b32 s100, s96")
        g(f"""s_waitcnt lgkmcnt(0)
        s_add_u32 s100, s100, 20000
        D_spin:
        s_memrealtime s[98:99]
        s_waitcnt lgkmcnt(0)
        s_sub_u32 s98, s98, s100
        s_cmp_lt_i32 s98, 0
        s_cbranch_scc1 D_spin""")
    if o.ronly:
        g(f"""s_memrealtime s[98:99]
        s_memtime s[94:95]
        s_waitcnt lgkmcnt(0)
        s_sub_u32 s98, s98, s96
        s_sub_u32 s94, s94, s100
        v_mov_b32 v3, s94
        v_mov_b32 v1, s98
        v_mov_b32 v2, 0
        s_lshl_b32 s20, s{sH}, 2
        s_add_u32 s20, s20, {WS_DBG + 1000*1024}
        buffer_store_dword v1, v2, s[{S_WS}:{S_WS+3}], s20 offen
        buffer_store_dword v3, v2, s[{S_WS}:{S_WS+3}], s20 offen offset:128
        s_waitcnt vmcnt(0)""")
        if o.stamps:
            g(f"""s_memrealtime s[98:99]
            s_waitcnt lgkmcnt(0)
            s_add_u32 s96, s98, 1100
            s_and_b32 s96, s96, 0xfffffc00
            s_mov_b32 s21, 0
            s_mov_b32 s22, 0
            C_spin:
            s_memrealtime s[98:99]
            s_memtime s[94:95]
            s_waitcnt lgkmcnt(0)
            s_sub_u32 s98, s98, s96
            s_cmp_lt_i32 s98, 0
            s_cbranch_scc1 C_spin
            s_lshr_b32 s94, s94, 3
            s_add_u32 s21, s21, s94
            s_add_u32 s96, s96, 52
            s_add_u32 s22, s22, 1
            s_cmp_lt_u32 s22, 8
            s_cbranch_scc1 C_spin
            v_mov_b32 v3, s21
            v_mov_b32 v1, s96
            buffer_store_dword v1, v2, s[{S_WS}:{S_WS+3}], s20 offen offset:256
            buffer_store_dword v3, v2, s[{S_WS}:{S_WS+3}], s20 offen offset:384
            s_waitcnt vmcnt(0)""")
    g("s_endpgm")
    body = g.text()
    if o.stamps: body = ("; RT\n" if o.rt else "") + "; STAMPS " + " ".join(o.stamp_names) + "\n" + body
    head = open("cdna_kernels/" + NAME + ".s.ref").read().split("; Override")[0]
    return (head + f"; @launch grid=(256,1,1) block=(256,1,1) lds={LDS_BYTES}\n"
      f'.amdgcn_target "amdgcn-amd-amdhsa--gfx950"\n.text\n.globl {NAME}_kernel\n.p2align 8\n.type {NAME}_kernel,@function\n{NAME}_kernel:\n'
      + body +
      f'.section .rodata,"a"\n.p2align 6\n.amdhsa_kernel {NAME}_kernel\n  .amdhsa_next_free_vgpr 512\n  .amdhsa_next_free_sgpr 102\n  .amdhsa_accum_offset 256\n'
      '  .amdhsa_group_segment_fixed_size 0\n  .amdhsa_kernarg_size 104\n  .amdhsa_user_sgpr_count 2\n  .amdhsa_user_sgpr_kernarg_segment_ptr 1\n'
      '  .amdhsa_system_sgpr_workgroup_id_x 1\n  .amdhsa_float_denorm_mode_32 3\n.end_amdhsa_kernel\n')

if __name__ == "__main__":
    o = Opt()
    out = sys.argv[1]
    for a in sys.argv[2:]:
        k, v = a.split("=")
        setattr(o, k, v if k == 'nt' else v.split(',') if k in ('sel', 'posa', 'posm') else [int(x) for x in v.split(',')] if ',' in v else int(v))
    open(out, "w").write(gen(o))
```
